```python
import torch

def _softmax(x, axis=-1):
    return torch.softmax(x, dim=axis)
def _gelu(x):
    return torch.nn.functional.gelu(x, approximate="tanh")
def _silu(x):
    return torch.nn.functional.silu(x)
def _sigmoid(x):
    return torch.sigmoid(x)
def _layernorm(x, axis=-1, eps=1e-5):
    m = x.mean(dim=axis, keepdim=True)
    v = x.var(dim=axis, keepdim=True, unbiased=False)
    return (x - m) / torch.sqrt(v + eps)
def _scatter_add(tgt, idx, src, axis=0):
    return tgt.clone().index_add_(axis, idx, src)
def _segment_sum(src, seg, n):
    out = torch.zeros((n,) + src.shape[1:], dtype=src.dtype)
    return out.index_add_(0, seg, src)
def _pad(x, pw):
    flat = tuple(v for pair in reversed(pw) for v in pair)
    return torch.nn.functional.pad(x, flat)

kernel_name = 'gated_mix__ssm_conv_h3__mixer_channel_mlp__prompt'

def setup_inputs():

    _w = (lambda a: (lambda t: t.to(torch.bfloat16) if t.is_floating_point() else t)(torch.as_tensor(a)))
    def _A_setup():
        B, S, D = 1, 2048, 640
        ks = 4
        return {
            "q": _w((lambda *s: torch.randn(*s, dtype=torch.bfloat16) * 0.05)(B, S, D)),
            "k": _w((lambda *s: torch.randn(*s, dtype=torch.bfloat16) * 0.4)(B, S, D)),
            "v": _w((lambda *s: torch.randn(*s, dtype=torch.bfloat16) * 0.4)(B, S, D)),
            "shift_k": _w((lambda *s: torch.randn(*s, dtype=torch.bfloat16) * 0.4)(D, ks) * 0.5),
            "ssm_k": _w((lambda *s: torch.randn(*s, dtype=torch.bfloat16) * 1.6)(D, S) * (1.0 / S ** 0.5)),
            "ssm_D": _w((lambda *s: torch.randn(*s, dtype=torch.bfloat16) * 0.4)(D)),
        }
    _A_in = _A_setup()

    def _B_setup():
        B, S, D, F = 1, 2048, 640, 1536
        return {
            "x": _w((lambda *s: torch.randn(*s, dtype=torch.bfloat16) * 0.05)(B, S, D)),
            "w1": _w((lambda *s: torch.randn(*s, dtype=torch.bfloat16) * 0.8)(D, F) * (D ** -0.5)),
            "b1": _w((lambda *s: torch.randn(*s, dtype=torch.bfloat16) * 0.4)(F)),
            "w2": _w((lambda *s: torch.randn(*s, dtype=torch.bfloat16) * 0.05)(F, D) * (F ** -0.5)),
            "b2": _w((lambda *s: torch.randn(*s, dtype=torch.bfloat16) * 0.05)(D)),
        }
    _B_in = _B_setup()

    return {
        "A_q": _A_in["q"],
        "A_k": _A_in["k"],
        "A_v": _A_in["v"],
        "A_shift_k": _A_in["shift_k"],
        "A_ssm_k": _A_in["ssm_k"],
        "A_ssm_D": _A_in["ssm_D"],
        "B_x": _B_in["x"],
        "B_w1": _B_in["w1"],
        "B_b1": _B_in["b1"],
        "B_w2": _B_in["w2"],
        "B_b2": _B_in["b2"],
        "gate_w": _w((lambda *s: torch.randn(*s, dtype=torch.bfloat16) * 0.05)(640) * 16.0),
    }

def reference(A_q, A_k, A_v, A_shift_k, A_ssm_k, A_ssm_D, B_x, B_w1, B_b1, B_w2, B_b2, gate_w):
    def _A_ref(q, k, v, shift_k, ssm_k, ssm_D):
        B, S, D = q.shape
        ks = shift_k.shape[-1]
        k_pad = _pad(k, ((0, 0), (ks - 1, 0), (0, 0)))
        k_shift = torch.zeros_like(k)
        for t in range(ks):
            k_shift = k_shift + k_pad[:, t:t + S, :] * shift_k[:, ks - 1 - t][None, None, :]
        kv = k_shift * v
        L = 2 * S
        kv_pad = _pad(kv, ((0, 0), (0, S), (0, 0)))
        kf_pad = _pad(ssm_k, ((0, 0), (0, S)))
        kv_f = (lambda x, axes=(-2,-1): torch.fft.rfft2(x.float(), dim=axes))(kv_pad[:, None, :, :], axes=(1, 2))
        kf_f = (lambda x, axes=(-2,-1): torch.fft.rfft2(x.float(), dim=axes))(kf_pad[:, None, :], axes=(1, 2))
        kf_f = (lambda x, *d: x.permute(*d))(kf_f, 1, 2, 0)
        y_f = kv_f * kf_f[None, :, :, :]
        y = (lambda x, s, axes=(-2,-1): torch.fft.irfft2(x, s=s, dim=axes).to(torch.bfloat16))(y_f, (1, L), axes=(1, 2))[:, 0, :S, :]
        y = y + kv * ssm_D[None, None, :]
        return q * y

    def _B_ref(x, w1, b1, w2, b2):
        y = _layernorm(x, axis=-1)
        h = _gelu(torch.einsum("bsd,df->bsf", y, w1) + b1)
        return torch.einsum("bsf,fd->bsd", h, w2) + b2

    x = A_q
    g = _sigmoid((x * gate_w).sum(-1, keepdims=True))
    a = _A_ref(x, A_k, A_v, A_shift_k, A_ssm_k, A_ssm_D)
    b = _B_ref(x, B_w1, B_b1, B_w2, B_b2)
    return g * a + (1 - g) * b
```

```python
KN = "gated_mix__ssm_conv_h3__mixer_channel_mlp__prompt"
HDR = """; Kernarg layout (120 bytes, ptrs only, base s[0:1]): 0 q, 8 k, 16 v, 24 shift_k, 32 ssm_k, 40 ssm_D, 48 B_x,
"""
def kernel_desc(name, vgpr, sgpr=102, accum=None, extra=""):
    if accum is None:
        accum = min(256, (vgpr + 3) // 4 * 4)
    return f""".p2align 6
.amdhsa_kernel {name}
  .amdhsa_next_free_vgpr {vgpr}
  .amdhsa_next_free_sgpr {sgpr}
  .amdhsa_accum_offset {accum}
  .amdhsa_group_segment_fixed_size 0
  .amdhsa_kernarg_size 120
  .amdhsa_user_sgpr_count 2
  .amdhsa_user_sgpr_kernarg_segment_ptr 1
  .amdhsa_system_sgpr_workgroup_id_x 1
{extra}.end_amdhsa_kernel
"""
def build_file(kernels):
    s = HDR
    if len(kernels) == 1 and kernels[0]["name"] == KN + "_kernel":
        k = kernels[0]
        s += f"; @launch grid=({k['grid']},1,1) block=({k['block']},1,1) lds={k['lds']}\n"
    else:
        for k in kernels:
            s += f"; @launch kernel={k['name']} grid=({k['grid']},1,1) block=({k['block']},1,1) lds={k['lds']}\n"
    s += '.amdgcn_target "amdgcn-amd-amdhsa--gfx950"\n.text\n'
    seen = set()
    for k in kernels:
        if k["name"] in seen: continue
        seen.add(k["name"])
        s += f".globl {k['name']}\n.p2align 8\n.type {k['name']},@function\n{k['name']}:\n"
        s += k["body"].rstrip("\n") + "\n"
    s += '.section .rodata,"a"\n'
    seen = set()
    for k in kernels:
        if k["name"] in seen: continue
        seen.add(k["name"])
        s += kernel_desc(k["name"], k["vgpr"], k.get("sgpr", 102), k.get("accum"), k.get("extra", ""))
    return s
```

```python
from gen_common import *

CV = 21216
URL = 16640
PSRC = 21504
YL = 86016
K2_LDS = YL + 80*144
NST2 = 8

def mfma_order():
    rem = [(x, y) for x in range(8) for y in range(8) if x + y < 8]
    out = []
    while rem:
        cnt = {}
        for x, y in rem: cnt[x+y] = cnt.get(x+y, 0) + 1
        recent = [a+b for a, b in out[-3:]]
        cand = [p for p in rem if p[0]+p[1] not in recent] or rem
        cand.sort(key=lambda p: (-cnt[p[0]+p[1]], max(p)))
        out.append(cand[0]); rem.remove(cand[0])
    return out

def gen_k2(G):
    Asm, vr, opt, stamp = G.Asm, G.vr, G.opt, G.stamp
    UR, YT, WF, HF, GG, FL, WS_SIZE = G.UR, G.YT, G.WF, G.HF, G.GG, G.FL, G.WS_SIZE
    STAMP2 = G.STAMP + 256*8*8
    A = Asm()
    A(G.KARG)
    A("s_cmp_ge_u32 s2, 256\ns_cbranch_scc1 K2_end")
    A("v_lshrrev_b32 v1, 6, v0\nv_mov_b32 v2, v0\nv_and_b32 v0, 63, v0")
    A("s_and_b32 s64, s2, 7\ns_lshr_b32 s65, s2, 3")
    A("v_readfirstlane_b32 s3, v1")
    A("s_lshr_b32 s66, s65, 2\ns_and_b32 s67, s65, 3\ns_lshr_b32 s68, s64, 1\ns_lshl3_add_u32 s68, s68, s66")
    A("s_and_b32 s69, s64, 1\ns_lshl2_add_u32 s69, s69, s67")
    A("v_lshlrev_b32 v1, 4, v0")
    A("s_cmp_lt_u32 s3, 4\ns_cbranch_scc1 K2_gemm")

    FQ = 224
    FG = 230
    FB = 234
    FO = 240
    FP = 243
    FY = 246
    def final_pre(nt):
        A.srd(16, 32, 2621440)
        A.srd(20, 54, 1280)
        A.srd(24, 58, 2621440)
        A("s_mul_i32 s70, s68, 81920\ns_mul_i32 s71, s69, 160\ns_add_u32 s70, s70, s71")
        A(f"s_lshl_b32 s72, s68, 8\ns_add_u32 s72, s72, {GG}")
        A("s_movk_i32 s73, 1120\ns_movk_i32 s74, 144")
        for n in range(nt):
            T = 250
            A(f"v_add_u32 v{T}, {512*n}, v2")
            A(f"v_mul_u32_u24 v{T+1}, 3277, v{T}\nv_lshrrev_b32 v{T+1}, 16, v{T+1}")
            A(f"v_lshlrev_b32 v{T+2}, 3, v{T}")
            A(f"v_mad_u32_u24 v{FO+n}, v{T+1}, s73, v{T+2}")
            A.vmem(f"buffer_load_dwordx2 {vr(FQ+2*n,2)}, v{FO+n}, s[16:19], s70 offen", "fin")
            A(f"v_lshlrev_b32 v{T+3}, 2, v{T+1}")
            A.vmem(f"buffer_load_dword v{FG+n}, v{T+3}, s[12:15], s72 offen", "fin")
            A(f"v_mul_u32_u24 v{T+3}, 20, v{T+1}\nv_sub_u32 v{T+3}, v{T}, v{T+3}")
            A(f"v_lshlrev_b32 v{T+4}, 3, v{T+3}")
            A.vmem(f"buffer_load_dwordx2 {vr(FB+2*n,2)}, v{T+4}, s[20:23], s71 offen", "fin")
            A(f"v_add_lshl_u32 v{FP+n}, v{T}, v{T+1}, 4")
            A(f"v_lshlrev_b32 v{T+4}, 1, v{T+1}")
            A(f"v_mad_u32_u24 v{FY+n}, v{T+3}, s74, v{T+4}")
            A(f"v_add_u32 v{FY+n}, {YL}, v{FY+n}")
    def final_mid(nt, R):
        for n in range(nt):
            qg = R + 10*n; bb = qg + 4; om = qg + 8
            A(f"v_lshlrev_b32 v{qg}, 16, v{FQ+2*n}\nv_and_b32 v{qg+1}, 0xffff0000, v{FQ+2*n}")
            A(f"v_lshlrev_b32 v{qg+2}, 16, v{FQ+2*n+1}\nv_and_b32 v{qg+3}, 0xffff0000, v{FQ+2*n+1}")
            A(f"v_lshlrev_b32 v{bb}, 16, v{FB+2*n}\nv_and_b32 v{bb+1}, 0xffff0000, v{FB+2*n}")
            A(f"v_lshlrev_b32 v{bb+2}, 16, v{FB+2*n+1}\nv_and_b32 v{bb+3}, 0xffff0000, v{FB+2*n+1}")
            A(f"v_sub_f32 v{om}, 1.0, v{FG+n}\nv_sub_f32 v{om+1}, 1.0, v{FG+n}")
            for i in range(4): A(f"v_mul_f32 v{qg+i}, v{FG+n}, v{qg+i}")
    def final_post(nt, R, D):
        for n in range(nt):
            d = D + 20*n
            for e in range(4): A(f"v_mov_b32 v{d+16+e}, 0")
        for n in range(nt):
            d = D + 20*n
            for s in range(4):
                A(f"ds_read_b128 {vr(d+4*s,4)}, v{FP+n} offset:{s*PSRC}")
            for e in range(4):
                A(f"ds_read_u16_d16_hi v{d+16+e}, v{FY+n} offset:{e*2880}")
        for n in range(nt):
            d = D + 20*n; qg = R + 10*n; bb = qg + 4; om = qg + 8
            A(f"s_waitcnt lgkmcnt({min(15, 8*(nt-1-n))})")
            for h in range(2):
                A(f"v_pk_add_f32 {vr(d+2*h,2)}, {vr(d+2*h,2)}, {vr(d+4+2*h,2)}")
                A(f"v_pk_add_f32 {vr(d+8+2*h,2)}, {vr(d+8+2*h,2)}, {vr(d+12+2*h,2)}")
                A(f"v_pk_add_f32 {vr(d+2*h,2)}, {vr(d+2*h,2)}, {vr(bb+2*h,2)}")
                A(f"v_pk_mul_f32 {vr(d+16+2*h,2)}, {vr(d+16+2*h,2)}, {vr(qg+2*h,2)}")
                A(f"v_pk_add_f32 {vr(d+2*h,2)}, {vr(d+2*h,2)}, {vr(d+8+2*h,2)}")
                A(f"v_pk_fma_f32 {vr(d+2*h,2)}, {vr(d+2*h,2)}, {vr(om,2)}, {vr(d+16+2*h,2)}")
            A(f"v_cvt_pk_bf16_f32 v{d+4}, v{d}, v{d+1}\nv_cvt_pk_bf16_f32 v{d+5}, v{d+2}, v{d+3}")
            A(f"buffer_store_dwordx2 {vr(d+4,2)}, v{FO+n}, s[24:27], s70 offen")

    A("s_sub_u32 s3, s3, 4")
    A("s_waitcnt lgkmcnt(0)")
    A.srd(12, 62, WS_SIZE)
    A("s_cmp_ge_u32 s65, 20\ns_cbranch_scc1 K2_noconv")
    A.vm = []
    A("s_setprio 2") if getattr(opt, "conv_prio", True) else None
    A("s_mul_i32 s75, s64, 20\ns_add_u32 s75, s75, s65\ns_lshl2_add_u32 s75, s75, s3")
    A("s_lshl_b32 s76, s75, 12")
    A("s_add_u32 s4, s40, s76\ns_addc_u32 s5, s41, 0\ns_movk_i32 s6, 4096\ns_mov_b32 s7, 0x20000")
    A.srd(8, 42, 1280)
    KW = 16
    for n in range(4):
        A.vmem(f"buffer_load_dwordx4 {vr(KW+6*n,4)}, v1, s[4:7], 0 offen offset:{1024*n}", f"k{n}")
        A.vmem(f"buffer_load_dwordx2 {vr(KW+6*n+4,2)}, v1, s[4:7], 0 offen offset:{1024*n+16}", f"k{n}")
        if n == 0:
            A("s_lshl_b32 s77, s75, 1\nv_mov_b32 v3, 0")
            A.vmem("buffer_load_ushort v4, v3, s[8:11], s77 offen", "k0")
    A(f"s_mul_i32 s78, s3, {CV}")
    A(f"s_add_u32 m0, s78, {URL}")
    A(f"s_add_u32 s79, s76, {UR}")
    for n in range(4):
        A.vmem(f"buffer_load_dwordx4 v1, s[12:15], s79 offen offset:{1024*n} lds", "ur")
    final_pre(2)
    Z = 40
    A(f"v_mov_b32 v{Z}, 0\nv_mov_b32 v{Z+1}, 0\nv_mov_b32 v{Z+2}, 0\nv_mov_b32 v{Z+3}, 0")
    A("v_min_u32 v5, 29, v0\nv_lshlrev_b32 v5, 4, v5\nv_add_u32 v5, s78, v5")
    A(f"ds_write_b128 v5, {vr(Z,4)} offset:{URL+4096}")
    A("v_bfe_u32 v5, v0, 1, 2\nv_mul_u32_u24 v5, 4160, v5\nv_and_b32 v6, 1, v0\nv_lshl_add_u32 v5, v6, 4, v5\nv_add_u32 v5, s78, v5")
    A(f"ds_write_b128 v5, {vr(Z,4)}")
    A("v_add_u32 v5, s78, v1")
    A("v_and_b32 v9, 15, v0\nv_add_u32 v10, 1, v9\nv_and_b32 v11, 3, v10\nv_mul_u32_u24 v6, 4160, v11")
    A("v_and_b32 v10, 28, v10\nv_lshl_add_u32 v6, v10, 1, v6\nv_and_b32 v11, 48, v0\nv_add3_u32 v6, v6, v11, s78")
    A("v_add_u32 v7, 2048, v6")
    A(f"v_lshlrev_b32 v9, 5, v9\nv_sub_u32 v8, v11, v9\ns_add_u32 s79, s78, {URL+480}\nv_add_u32 v8, s79, v8")
    C1 = 44; C2 = 48; C3 = 52
    for n in range(4):
        w = KW + 6*n
        A.wait_vm(f"k{n}")
        if n == 0:
            A(f"v_lshlrev_b32 v4, 16, v4\nv_lshlrev_b32 v9, 16, v{w}\nv_add_f32 v4, v4, v9\nv_and_b32 v9, 0xffff0000, v{w}")
            A("v_cmp_eq_u32 vcc, 0, v0")
            A("v_cvt_pk_bf16_f32 v4, v4, v9")
            A("s_nop 0")
            A(f"v_cndmask_b32 v{w}, v{w}, v4, vcc")
        A(f"ds_write_b128 v5, {vr(w,4)} offset:{32+1024*n}")
        for i in range(4): A(f"v_alignbit_b32 v{C1+i}, v{w+i+1}, v{w+i}, 16")
        A(f"ds_write_b128 v5, {vr(C1,4)} offset:{4160+32+1024*n}")
        for i in range(4): A(f"v_mov_b32 v{C2+i}, v{w+i+1}")
        A(f"ds_write_b128 v5, {vr(C2,4)} offset:{2*4160+32+1024*n}")
        for i in range(4): A(f"v_alignbit_b32 v{C3+i}, v{w+i+2}, v{w+i+1}, 16")
        A(f"ds_write_b128 v5, {vr(C3,4)} offset:{3*4160+32+1024*n}")
        if n == 0:
            A(f"v_lshlrev_b32 v56, 16, v{w}\nv_mov_b32 v57, v{C1}")
            A("s_mov_b64 exec, 1")
            A(f"ds_write_b32 v5, v56 offset:{4160+28}")
            A(f"ds_write_b32 v5, v{w} offset:{2*4160+28}")
            A(f"ds_write_b64 v5, v[56:57] offset:{3*4160+24}")
            A("s_mov_b64 exec, -1")
        A("s_waitcnt lgkmcnt(0)")
    A.wait_vm("ur")
    SETS = [64, 128]
    CACC = 192
    for i in range(32): A(f"v_mov_b32 v{CACC+i}, 0")
    def creads(st, r):
        b = SETS[st]
        for i in range(8):
            o = (64*(i & 3) + 8*r)
            A(f"ds_read2_b64 {vr(b+4*i,4)}, v{6+(i>>2)} offset0:{o} offset1:{o+1}")
            A(f"ds_read_b128 {vr(b+32+4*i,4)}, v8 offset:{3584-512*i+64*r}")
    order = mfma_order()
    def cmfma(st):
        b = SETS[st]
        for x, y in order:
            A(f"v_mfma_f32_16x16x32_bf16 {vr(CACC+4*(x+y),4)}, {vr(b+4*x,4)}, {vr(b+32+4*y,4)}, {vr(CACC+4*(x+y),4)}")
    stamp(A, 4, NST2, STAMP2, 250, 12)
    creads(0, 0)
    A("s_mov_b32 s80, 0")
    A("K2_cloop:")
    A("s_waitcnt lgkmcnt(0)")
    creads(1, 1)
    cmfma(0)
    A("v_add_u32 v6, 128, v6\nv_add_u32 v7, 128, v7\nv_add_u32 v8, 128, v8")
    A("s_waitcnt lgkmcnt(0)")
    A("s_add_u32 s80, s80, 1\ns_cmp_eq_u32 s80, 4\ns_cbranch_scc1 K2_cdone")
    creads(0, 0)
    cmfma(1)
    A("s_branch K2_cloop")
    A("K2_cdone:")
    cmfma(1)
    stamp(A, 5, NST2, STAMP2, 250, 12)
    A("v_and_b32 v9, 15, v0\nv_lshlrev_b32 v9, 5, v9\nv_lshrrev_b32 v10, 4, v0\nv_lshl_add_u32 v9, v10, 3, v9")
    A(f"s_add_u32 s79, s76, {YT}")
    A("s_nop 7")
    for J in range(8):
        A(f"v_cvt_pk_bf16_f32 v{16+2*J}, v{CACC+4*J}, v{CACC+4*J+1}\nv_cvt_pk_bf16_f32 v{17+2*J}, v{CACC+4*J+2}, v{CACC+4*J+3}")
        A(f"buffer_store_dwordx2 {vr(16+2*J,2)}, v9, s[12:15], s79 offen offset:{512*J} sc1")
    A(f"s_lshl_b32 s79, s75, 2\ns_add_u32 s79, s79, {FL}\nv_mov_b32 v10, 1\nv_mov_b32 v11, 0")
    A("s_waitcnt vmcnt(0)")
    A("buffer_store_dword v10, v11, s[12:15], s79 offen sc1")
    A("s_setprio 0")
    A("s_branch K2_poll")
    A("K2_noconv:")
    A.vm = []
    final_pre(2)
    A("K2_poll:")
    A(f"s_mul_i32 s79, s69, 80\ns_mul_i32 s80, s3, 20\ns_add_u32 s79, s79, s80")
    A(f"s_lshl_b32 s80, s79, 2\ns_add_u32 s80, s80, {FL}")
    A("v_min_u32 v9, 19, v0\nv_lshlrev_b32 v9, 2, v9")
    A("v_lshrrev_b32 v10, 3, v0\nv_lshlrev_b32 v10, 12, v10\nv_and_b32 v11, 7, v0\nv_lshl_add_u32 v10, v11, 4, v10")
    A(f"s_lshl_b32 s81, s79, 12\ns_lshl_b32 s82, s68, 7\ns_add_u32 s81, s81, s82\ns_add_u32 s81, s81, {YT}")
    A("s_add_u32 s82, s81, 32768\ns_add_u32 s83, s81, 65536")
    A("v_bfe_u32 v12, v0, 3, 2\nv_mul_u32_u24 v12, 2880, v12\nv_lshl_add_u32 v12, v11, 4, v12")
    A(f"v_lshrrev_b32 v11, 5, v0\nv_mul_u32_u24 v11, 144, v11\ns_mul_i32 s84, s3, 720\ns_add_u32 s84, s84, {YL}")
    A("v_add3_u32 v12, v12, v11, s84")
    A("s_mov_b32 s85, 0")
    A("K2_ploop:")
    A("buffer_load_dword v13, v9, s[12:15], s80 offen sc1")
    A("s_add_u32 s85, s85, 1")
    A("s_waitcnt vmcnt(0)")
    A("v_cmp_ne_u32 vcc, 1, v13")
    A("s_cmp_ge_u32 s85, 0x8000\ns_cbranch_scc1 K2_pdone")
    A("s_cbranch_vccnz K2_ploop")
    A("K2_pdone:")
    A("buffer_load_dwordx4 v[16:19], v10, s[12:15], s81 offen sc1")
    A("buffer_load_dwordx4 v[20:23], v10, s[12:15], s82 offen sc1")
    A("s_mov_b32 exec_hi, 0")
    A("buffer_load_dwordx4 v[24:27], v10, s[12:15], s83 offen sc1")
    A("s_mov_b64 exec, -1")
    final_mid(2, 112)
    A("s_waitcnt vmcnt(2)")
    A("ds_write_b128 v12, v[16:19]")
    A("s_waitcnt vmcnt(1)")
    A("ds_write_b128 v12, v[20:23] offset:288")
    A("s_waitcnt vmcnt(0)")
    A("s_mov_b32 exec_hi, 0")
    A("ds_write_b128 v12, v[24:27] offset:576")
    A("s_mov_b64 exec, -1")
    stamp(A, 6, NST2, STAMP2, 250, 12)
    A("s_waitcnt lgkmcnt(0)")
    A("s_barrier")
    A("s_barrier")
    final_post(2, 112, 16)
    A("s_endpgm")

    A("K2_gemm:")
    A.vm = []
    A("s_mul_i32 s75, s67, 3\ns_add_u32 s75, s75, s66\ns_cmp_ge_u32 s75, 12\ns_cselect_b32 s76, 12, 0\ns_sub_u32 s75, s75, s76")
    A(f"s_mul_i32 s76, s68, 196608\ns_mul_i32 s77, s3, {12*4096}\ns_add_u32 s76, s76, s77\ns_add_u32 s76, s76, {HF}")
    A(f"s_mul_i32 s77, s69, 245760\ns_mul_i32 s78, s3, {12*5120}\ns_add_u32 s77, s77, s78\ns_add_u32 s77, s77, {WF}")
    A("s_lshl_b32 s78, s75, 12\ns_mul_i32 s79, s75, 5120")
    A("v_add_u32 v3, 4096, v1")
    A("s_waitcnt lgkmcnt(0)")
    A.srd(12, 62, WS_SIZE)
    stamp(A, 0, NST2, STAMP2, 250, 12)
    DEPTH = getattr(opt, "g2_depth", 3)
    RING = 4
    GACC = 144
    assert RING + 36*DEPTH <= GACC
    def gissue(s):
        b = RING + 36*(s % DEPTH)
        A("s_add_u32 s80, s76, s78\ns_add_u32 s81, s77, s79")
        for m in range(5):
            A.vmem(f"buffer_load_dwordx4 {vr(b+4*m,4)}, v{3 if m == 4 else 1}, s[12:15], s81 offen offset:{1024*(m%4)}", f"g{s}")
        for t in range(4):
            A.vmem(f"buffer_load_dwordx4 {vr(b+20+4*t,4)}, v1, s[12:15], s80 offen offset:{1024*t}", f"g{s}")
        A(f"s_add_u32 s78, s78, 4096\ns_add_u32 s79, s79, 5120\ns_cmp_eq_u32 s78, {12*4096}\ns_cselect_b32 s78, 0, s78\ns_cselect_b32 s79, 0, s79")
    for s in range(DEPTH): gissue(s)
    final_pre(3)
    A(f"v_and_b32 v250, 15, v0\nv_mul_u32_u24 v250, 336, v250\nv_and_b32 v251, 48, v0\ns_mul_i32 s82, s3, {PSRC}")
    A("v_add3_u32 v249, v250, v251, s82")
    for s in range(12):
        b = RING + 36*(s % DEPTH)
        A.wait_vm(f"g{s}")
        if s == 0: stamp(A, 1, NST2, STAMP2, 250, 12)
        for t in range(4):
            for m in range(5):
                acc = vr(GACC+4*(5*t+m), 4)
                A(f"v_mfma_f32_16x16x32_bf16 {acc}, {vr(b+4*m,4)}, {vr(b+20+4*t,4)}, {acc if s else 0}")
        if s + DEPTH < 12: gissue(s + DEPTH)
    if "fin" in A.vm: A.wait_vm("fin")
    stamp(A, 2, NST2, STAMP2, 250, 12)
    final_mid(3, 112)
    A("s_barrier")
    for t in range(4):
        for m in range(5):
            A(f"ds_write_b128 v249, {vr(GACC+4*(5*t+m),4)} offset:{t*16*336+64*m}")
    A("s_waitcnt lgkmcnt(0)")
    A("s_barrier")
    stamp(A, 3, NST2, STAMP2, 250, 12)
    final_post(3, 112, 16)
    if opt.stamps:
        A("s_waitcnt vmcnt(0)")
        stamp(A, 7, NST2, STAMP2, 250, 12)
    A("K2_end:")
    A("s_endpgm")
    return dict(name="gm_k2_kernel", grid=256, block=512, lds=K2_LDS, body=A.text(), vgpr=256)
```

```python
import sys
from gen_common import *

UR = 0
YT = 2621440
WF = 5242880
HF = WF + 1966080
GG = HF + 6291456
FL = GG + 8192
STAMP = 16 << 20
WS_SIZE = 0x10000000

class Asm:
    def __init__(self):
        self.L = []; self.vm = []
    def __call__(self, s):
        for ln in s.strip("\n").split("\n"):
            ln = ln.strip()
            if ln: self.L.append(ln)
    def vmem(self, s, tag):
        self.L.append(s); self.vm.append(tag)
    def wait_vm(self, tag):
        idx = max(i for i, t in enumerate(self.vm) if t == tag)
        n = len(self.vm) - 1 - idx
        assert n <= 63
        self.L.append(f"s_waitcnt vmcnt({n})")
        self.vm = self.vm[idx+1:]
    def srd(self, d, src, size):
        self(f"s_mov_b32 s{d}, s{src}\ns_mov_b32 s{d+1}, s{src+1}\ns_mov_b32 s{d+2}, {size}\ns_mov_b32 s{d+3}, 0x20000")
    def text(self): return "\n".join(self.L)

def vr(a, n): return f"v[{a}:{a+n-1}]" if n > 1 else f"v{a}"

KARG = """
s_load_dwordx16 s[32:47], s[0:1], 0
s_load_dwordx16 s[48:63], s[0:1], 56
"""

class Opt:
    stamps = False
    prep_pos = 1
    prep_stage = 3
opt = Opt()

def stamp(A, idx, nst, base, vtmp, wsrd, wavesel=None):
    if not opt.stamps: return
    A("s_memrealtime s[90:91]")
    A(f"s_mul_i32 s92, s2, {nst*8}")
    A(f"s_add_u32 s92, s92, {base + idx*8}")
    A("s_waitcnt lgkmcnt(0)")
    A(f"v_mov_b32 v{vtmp}, s90\nv_mov_b32 v{vtmp+1}, s91\nv_mov_b32 v{vtmp+2}, 0")
    A.vmem(f"buffer_store_dwordx2 v[{vtmp}:{vtmp+1}], v{vtmp+2}, s[{wsrd}:{wsrd+3}], s92 offen", "stamp")
    A("s_nop 1")

XB = 0; WB = 65536; PREP = 114688; CS = 135168; B1 = CS + 384; K1_LDS = B1 + 384
NST1 = 8
def k1_loader(A, gate, prepU, lab):
    A.vm = []
    VX = 4; VW = 8; VA = 11; T = 12
    def issue(s):
        buf = s % 4
        A(f"s_add_u32 m0, s72, {buf*16384}")
        A("s_add_u32 s76, s74, s78")
        for i in range(4):
            A.vmem(f"buffer_load_dwordx4 v{VX+i}, s[4:7], s76 offen offset:{1024*i} lds", f"st{s}")
        A(f"s_add_u32 m0, s73, {buf*12288}")
        A("s_add_u32 s77, s75, s79")
        for i in range(3):
            A.vmem(f"buffer_load_dwordx4 v{VW+i}, s[8:11], s77 offen offset:{1024*i} lds", f"st{s}")
        if gate:
            A.vmem(f"buffer_load_dwordx4 {vr(GW+4*s,4)}, v{VGW}, s[24:27], s78 offen", f"st{s}")
        A("s_add_u32 s78, s78, 128\ns_add_u32 s79, s79, 196608\ns_cmp_eq_u32 s78, 1280\ns_cselect_b32 s78, 0, s78\ns_cselect_b32 s79, 0, s79")
    GW = 100; VGW = 20; VG = 21
    KR = 40; VR_ = 62; SK = 80; PP = 24
    ACC = 22
    FR = 140
    if gate:
        A("s_lshl_b32 s80, s69, 2")
        A(f"v_add_u32 v{T}, s80, v2")
        A(f"v_xor_b32 v{T}, v{T}, v0")
        A(f"v_and_b32 v{T}, 7, v{T}")
        A(f"v_lshlrev_b32 v{VGW}, 4, v{T}")
        A("s_lshl_b32 s80, s69, 10")
        A(f"v_lshlrev_b32 v{VG}, 4, v0")
        A(f"v_add_u32 v{VG}, s80, v{VG}")
        A.srd(24, 56, 1280)
    def prep_loads():
        if prepU:
            A.srd(16, 34, 2621440)
            A.srd(20, 36, 2621440)
            A.srd(28, 38, 5120)
            A("s_cmp_ge_u32 s65, 10\ns_cselect_b32 s81, 1, 0\ns_cselect_b32 s82, 10, 0")
            A("s_lshl1_add_u32 s81, s64, s81")
            A("s_sub_u32 s82, s65, s82")
            A("s_lshl_b32 s83, s81, 2\ns_add_u32 s83, s83, s3\ns_lshl_b32 s83, s83, 2")
            A(f"v_add_u32 v{T}, s83, v2")
            A(f"v_and_b32 v{T+1}, 15, v0")
            A(f"v_mul_u32_u24 v{T+2}, 10240, v{T}")
            A(f"v_lshl_add_u32 v{T+2}, v{T+1}, 3, v{T+2}")
            A("s_lshl_b32 s84, s82, 7")
            A(f"v_add_u32 v{T+2}, s84, v{T+2}")
            A(f"v_subrev_u32 v{T+3}, 3840, v{T+2}")
            A(f"v_cmp_eq_u32 vcc, 0, v{T}")
            A(f"v_mov_b32 v{T+4}, 0x80000000")
            A(f"v_lshlrev_b32 v{T+5}, 5, v{T+1}")
            A(f"v_cndmask_b32 v{T+3}, v{T+3}, v{T+4}, vcc")
            A("s_lshl_b32 s84, s82, 9")
            A("s_movk_i32 s85, 3840\ns_movk_i32 s86, 7680")
            A.vmem(f"buffer_load_dwordx4 {vr(SK,4)}, v{T+5}, s[28:31], s84 offen", "prep")
            A.vmem(f"buffer_load_dwordx4 {vr(SK+4,4)}, v{T+5}, s[28:31], s84 offen offset:16", "prep")
            for r in range(3):
                A.vmem(f"buffer_load_dwordx2 {vr(KR+2*r,2)}, v{T+3}, s[16:19], 0 offen offset:{1280*r}", "prep")
            for r in range(8):
                so = ["0", "s85", "s86"][r // 3]
                A.vmem(f"buffer_load_dwordx2 {vr(KR+6+2*r,2)}, v{T+2}, s[16:19], {so} offen offset:{1280*(r%3)}", "prep")
            for r in range(8):
                so = ["0", "s85", "s86"][r // 3]
                A.vmem(f"buffer_load_dwordx2 {vr(VR_+2*r,2)}, v{T+2}, s[20:23], {so} offen offset:{1280*(r%3)}", "prep")
            A(f"v_mul_u32_u24 v{PP}, 272, v{T+1}")
            A(f"v_lshlrev_b32 v{T}, 4, v2")
            A(f"v_sub_u32 v{PP}, v{PP}, v{T}")
            A(f"s_lshl_b32 s84, s3, 6\ns_sub_u32 s84, {PREP+240}, s84")
            A(f"v_add_u32 v{PP}, s84, v{PP}")
            A(f"v_mul_u32_u24 v{PP+1}, 272, v2")
            A(f"v_lshl_add_u32 v{PP+1}, v{T+1}, 4, v{PP+1}")
            A(f"s_mul_i32 s84, s3, {16*272}\ns_add_u32 s84, s84, {PREP}")
            A(f"v_add_u32 v{PP+1}, s84, v{PP+1}")
            A(f"v_lshlrev_b32 v{PP+2}, 14, v2")
            A(f"v_lshl_add_u32 v{PP+2}, v{T+1}, 4, v{PP+2}")
            A(f"s_lshl_b32 s84, s82, 6\ns_add_u32 s84, s84, s3\ns_lshl_b32 s84, s84, 12")
            A(f"s_lshl_b32 s85, s81, 8\ns_sub_u32 s85, {UR+3840}, s85\ns_add_u32 s87, s84, s85")
            A("s_mov_b32 s88, 0x05040100\ns_mov_b32 s89, 0x07060302")
        else:
            A.srd(16, 52, 1966080)
            A("s_mul_i32 s81, s64, 12\ns_add_u32 s81, s81, s65\ns_sub_u32 s81, s81, 20")
            A("s_mul_i32 s82, s81, 20480\ns_mul_i32 s83, s3, 320\ns_add_u32 s82, s82, s83")
            A(f"s_mul_i32 s83, s3, 5120\ns_add_u32 s83, s83, {PREP}")
            A(f"v_lshlrev_b32 v{T+1}, 4, v0")
            for n in range(5):
                A(f"v_add_u32 v{T}, {64*n}, v0")
                A(f"v_mul_u32_u24 v{T}, 205, v{T}")
                A(f"v_lshrrev_b32 v{T}, 12, v{T}")
                if n == 0: A("s_mov_b32 m0, s83")
                if n == 4: A(f"s_add_u32 m0, s83, 4096\ns_add_u32 s82, s82, 4096")
                A(f"v_mad_u32_u24 v{T}, v{T}, s94, v{T+1}")
                A.vmem(f"buffer_load_dwordx4 v{T}, s[16:19], s82 offen offset:{1024*(n%4)} lds", "prep")
            A(f"v_lshrrev_b32 v{T}, 5, v0")
            A(f"v_bfe_u32 v{T+1}, v0, 2, 2")
            A(f"v_lshl_add_u32 v{T+1}, v{T}, 2, v{T+1}")
            A(f"v_mul_u32_u24 v{PP}, 320, v{T+1}")
            A(f"v_and_b32 v{T+1}, 1, v2")
            A(f"v_mul_u32_u24 v{T+2}, 160, v{T+1}")
            A(f"v_and_b32 v{T+3}, 3, v0")
            A(f"v_lshl_add_u32 v{T+2}, v{T+3}, 3, v{T+2}")
            A(f"v_add3_u32 v{PP}, v{PP}, v{T+2}, s83")
            A(f"v_mul_u32_u24 v{PP+1}, 245760, v{T+1}")
            A(f"v_lshl_add_u32 v{PP+1}, v{T}, 8, v{PP+1}")
            A(f"v_and_b32 v{T+3}, 15, v0")
            A(f"v_lshl_add_u32 v{PP+1}, v{T+3}, 4, v{PP+1}")
            A(f"s_mul_i32 s84, s3, 491520\ns_lshr_b32 s85, s81, 1\ns_mul_i32 s85, s85, 5120\ns_add_u32 s84, s84, s85")
            A(f"s_and_b32 s85, s81, 1\ns_lshl_b32 s85, s85, 9\ns_add_u32 s84, s84, s85\ns_add_u32 s87, s84, {WF}\ns_add_u32 s88, s87, 4096")
    def prepU_chan(e):
        d = e >> 1; hf = e & 1
        sel = "s89" if hf else "s88"
        P = FR
        K = FR + 10
        O = FR + 18
        for t in range(-2, 8):
            A(f"v_perm_b32 v{P+t+2}, v{KR+2*(t+2)+d}, v{KR+2*(t+3)+d}, {sel}")
        for t in range(8):
            A(f"v_dot2_f32_bf16 v{K+t}, v{P+t}, v{SK+2*e+1}, 0")
        for t in range(8):
            A(f"v_dot2c_f32_bf16 v{K+t}, v{P+t+2}, v{SK+2*e}")
        for t in range(8):
            if hf: A(f"v_and_b32 v{P+t}, 0xffff0000, v{VR_+2*t+d}")
            else: A(f"v_lshlrev_b32 v{P+t}, 16, v{VR_+2*t+d}")
        for t in range(8):
            A(f"v_mul_f32 v{K+t}, v{K+t}, v{P+t}")
        for i in range(4):
            A(f"v_cvt_pk_bf16_f32 v{O+i}, v{K+7-2*i}, v{K+6-2*i}")
        A(f"ds_write_b128 v{PP}, {vr(O,4)} offset:{e*16*272}")
    def prepU_out():
        for n in range(4):
            A(f"ds_read_b128 {vr(KR+4*n,4)}, v{PP+1} offset:{n*4*272}")
        for n in range(4):
            A(f"s_waitcnt lgkmcnt({3-n})")
            A.vmem(f"buffer_store_dwordx4 {vr(KR+4*n,4)}, v{PP+2}, s[12:15], s87 offen", "pst")
            if n < 3: A("s_add_u32 s87, s87, 65536")
    def prepW_out():
        for n in range(5):
            for h in range(2):
                A(f"ds_read_b64_tr_b16 {vr(KR+4*n+2*h,2)}, v{PP} offset:{h*2560+32*n}")
        for n in range(5):
            A(f"s_waitcnt lgkmcnt({8-2*n})")
            A.vmem(f"buffer_store_dwordx4 {vr(KR+4*n,4)}, v{PP+1}, s[12:15], {'s88' if n == 4 else 's87'} offen offset:{1024*(n%4)}", "pst")
    A(f"v_mov_b32 v{ACC}, 0\nv_mov_b32 v{ACC+1}, 0")
    for s in range(3):
        if opt.prep_pos == s: prep_loads()
        issue(s)
    if opt.prep_pos >= 3: prep_loads()
    if not gate:
        A.srd(24, 50, 3072)
        A(f"v_and_b32 v{T}, 31, v0\nv_lshlrev_b32 v{T}, 1, v{T}")
        A("s_mul_i32 s80, s69, 192\ns_lshl_b32 s93, s3, 6\ns_add_u32 s80, s80, s93")
        A.vmem(f"buffer_load_ushort v{VG}, v{T}, s[24:27], s80 offen", "b1")
        A(f"v_lshrrev_b32 v{T}, 5, v0\nv_bfe_u32 v{T+1}, v0, 2, 2\nv_lshl_add_u32 v{T}, v{T}, 3, v{T+1}")
        A(f"v_mul_u32_u24 v{VA}, 192, v{T}")
        A(f"v_and_b32 v{T}, 1, v2\nv_lshl_add_u32 v{VA}, v{T}, 5, v{VA}")
        A(f"v_and_b32 v{T}, 3, v0\nv_lshl_add_u32 v{VA}, v{T}, 3, v{VA}")
        A(f"s_add_u32 s93, s93, {WB}")
        A(f"v_add_u32 v{VA}, s93, v{VA}")
    ps = opt.prep_stage
    for s in range(10):
        buf = s % 4
        A.wait_vm(f"st{s}")
        A("s_barrier")
        if s + 3 < 10: issue(s + 3)
        if gate:
            A(f"ds_read_b128 {vr(FR,4)}, v{VG} offset:{buf*16384}")
            A("s_waitcnt lgkmcnt(0)")
            for i in range(4):
                A(f"v_dot2c_f32_bf16 v{ACC+(i&1)}, v{FR+i}, v{GW+4*s+i}")
        else:
            for j in range(4):
                for h in range(2):
                    A(f"ds_read_b64_tr_b16 {vr(FR+4*j+2*h,2)}, v{VA} offset:{buf*12288+(16*j+4*h)*192}")
            for j in range(4):
                A(f"s_waitcnt lgkmcnt({6-2*j})")
                for i in range(4):
                    A(f"v_dot2c_f32_bf16 v{ACC+(i&1)}, s95, v{FR+4*j+i}")
        if prepU:
            if s == ps and "prep" in A.vm: A.wait_vm("prep")
            if ps <= s < ps + 4:
                A("s_nop 2")
                prepU_chan(s - ps)
                if s == ps + 3: A("s_waitcnt lgkmcnt(0)")
            if s == ps + 4: prepU_out()
        else:
            if s == ps:
                if "prep" in A.vm: A.wait_vm("prep")
                prepW_out()
    A("s_nop 2")
    A(f"v_add_f32 v{ACC}, v{ACC}, v{ACC+1}")
    if gate:
        A("s_nop 1")
        A(f"v_add_f32_dpp v{ACC}, v{ACC}, v{ACC} quad_perm:[1,0,3,2] row_mask:0xf bank_mask:0xf")
        A("s_nop 1")
        A(f"v_add_f32_dpp v{ACC}, v{ACC}, v{ACC} quad_perm:[2,3,0,1] row_mask:0xf bank_mask:0xf")
        A("s_nop 1")
        A(f"v_add_f32_dpp v{ACC}, v{ACC}, v{ACC} row_half_mirror row_mask:0xf bank_mask:0xf")
        A("s_barrier")
        A(f"v_mul_f32 v{ACC}, 0xbfb8aa3b, v{ACC}")
        A(f"v_exp_f32 v{ACC}, v{ACC}")
        A(f"v_lshrrev_b32 v{T}, 3, v0")
        A(f"v_add_f32 v{ACC}, 1.0, v{ACC}")
        A(f"v_rcp_f32 v{ACC}, v{ACC}")
        A(f"v_lshlrev_b32 v{T}, 2, v{T}")
        A(f"s_lshl_b32 s80, s68, 9\ns_lshl_b32 s93, s69, 5\ns_add_u32 s80, s80, s93\ns_add_u32 s80, s80, {GG}")
        A(f"buffer_store_dword v{ACC}, v{T}, s[12:15], s80 offen")
        A(f"s_cmp_ge_u32 s2, 10\ns_cbranch_scc1 {lab}_nofl")
        A(f"v_lshlrev_b32 v{T+2}, 2, v0\nv_mov_b32 v{T+1}, 0\ns_lshl_b32 s80, s2, 8\ns_add_u32 s80, s80, {FL}")
        A(f"buffer_store_dword v{T+1}, v{T+2}, s[12:15], s80 offen")
        A(f"{lab}_nofl:")
    else:
        A(f"v_mov_b32 v{ACC+1}, v{ACC}")
        if "b1" in A.vm: A.wait_vm("b1")
        A(f"v_lshlrev_b32 v{VG}, 16, v{VG}")
        A(f"v_and_b32 v{T}, 31, v0")
        A(f"v_permlane32_swap_b32 v{ACC}, v{ACC+1}")
        A(f"v_lshlrev_b32 v{T}, 2, v{T}")
        A(f"s_lshl_b32 s80, s3, 7\ns_add_u32 s80, s80, {CS}")
        A(f"v_add_f32 v{ACC}, v{ACC}, v{ACC+1}")
        A(f"v_add_u32 v{T}, s80, v{T}")
        A(f"ds_write_b32 v{T}, v{ACC}")
        A(f"ds_write_b32 v{T}, v{VG} offset:384")
        A("s_waitcnt lgkmcnt(0)")
        A("s_barrier")
    A("s_endpgm")

def k1_compute(A):
    A.vm = []
    VA0 = 4; VB0 = 5; VA = 6; VB = 8
    SX = 12; SQ = 14
    SET = [16, 32]
    ACC = 48
    CSR = 96; B1R = 144
    T = 192
    A(f"v_lshrrev_b32 v2, 4, v0")
    A(f"v_lshrrev_b32 v{T}, 5, v0\nv_bfe_u32 v{T+1}, v0, 2, 2\nv_lshl_add_u32 v{T+1}, v{T}, 3, v{T+1}")
    A(f"v_mul_u32_u24 v{VA0}, 192, v{T+1}")
    A(f"v_and_b32 v{T+1}, 1, v2\nv_lshl_add_u32 v{VA0}, v{T+1}, 5, v{VA0}")
    A(f"v_and_b32 v{T+1}, 3, v0\nv_lshl_add_u32 v{VA0}, v{T+1}, 3, v{VA0}")
    A(f"v_add_u32 v{VA0}, {WB}, v{VA0}")
    A(f"v_bfe_u32 v{T+1}, v0, 1, 3\nv_xor_b32 v{T+1}, v{T+1}, v{T}")
    A(f"v_and_b32 v{T+2}, 31, v0\nv_lshlrev_b32 v{T+2}, 7, v{T+2}")
    A(f"v_lshl_add_u32 v{VB0}, v{T+1}, 4, v{T+2}")
    A(f"s_lshl_b32 s72, s3, 12")
    A(f"v_add_u32 v{VB0}, s72, v{VB0}")
    for i in range(48): A(f"v_mov_b32 v{ACC+i}, 0")
    for i in range(4): A(f"v_mov_b32 v{SX+i}, 0")
    A(f"v_mov_b32 v{VA}, v{VA0}\nv_mov_b32 v{VB}, v{VB0}")
    for j in range(1, 4): A(f"v_xor_b32 v{VB+j}, {32*j}, v{VB}")
    A("s_mov_b32 s73, 0\ns_mov_b32 s74, 0\ns_mov_b32 s75, 0")
    A(f"v_and_b32 v{T+1}, 1, v2\nv_lshlrev_b32 v3, 10, v{T+1}\nv_lshl_add_u32 v3, v{T}, 8, v3")
    A(f"v_and_b32 v{T+1}, 15, v0\nv_lshl_add_u32 v3, v{T+1}, 4, v3")
    A(f"v_lshlrev_b32 v7, 4, v{T}\nv_add_u32 v7, {CS}, v7")
    A("s_lshr_b32 s76, s3, 1\ns_lshl1_add_u32 s76, s68, s76\ns_mul_i32 s76, s76, 196608")
    A("s_mul_i32 s77, s69, 12288\ns_add_u32 s76, s76, s77\ns_and_b32 s77, s3, 1\ns_lshl_b32 s77, s77, 11\ns_add_u32 s76, s76, s77")
    A(f"s_add_u32 s76, s76, {HF}")
    def reads(j, st):
        b = SET[st]
        A(f"ds_read_b128 {vr(b,4)}, v{VB+j}")
        for m in range(3):
            for h in range(2):
                A(f"ds_read_b64_tr_b16 {vr(b+4+4*m+2*h,2)}, v{VA} offset:{(16*j+4*h)*192+64*m}")
    def mfmas(st):
        b = SET[st]
        dots = []
        for i in range(4):
            dots.append(f"v_dot2c_f32_bf16 v{SX+(i&1)}, s95, v{b+i}")
            dots.append(f"v_dot2c_f32_bf16 v{SQ+(i&1)}, v{b+i}, v{b+i}")
        for m in range(3):
            A(f"v_mfma_f32_32x32x16_bf16 {vr(ACC+16*m,16)}, {vr(b+4+4*m,4)}, {vr(b,4)}, {vr(ACC+16*m,16)}")
            for dd in dots[3*m:3*m+3]: A(dd)
    stamp(A, 1, NST1, STAMP, T+4, 12)
    A("s_barrier")
    stamp(A, 2, NST1, STAMP, T+4, 12)
    reads(0, 0)
    A("K1c_loop:")
    for j in range(3):
        reads(j+1, (j+1) & 1)
        A("s_waitcnt lgkmcnt(7)")
        mfmas(j & 1)
    A("s_add_u32 s73, s73, 16384\ns_and_b32 s73, s73, 0xffff\ns_add_u32 s74, s74, 12288\ns_cmp_eq_u32 s73, 0\ns_cselect_b32 s74, 0, s74")
    A(f"v_add_u32 v{VA}, s74, v{VA0}\nv_add_u32 v{VB}, s73, v{VB0}")
    for j in range(1, 4): A(f"v_xor_b32 v{VB+j}, {32*j}, v{VB}")
    A("s_waitcnt lgkmcnt(0)")
    A("s_barrier")
    A("s_add_u32 s75, s75, 1\ns_cmp_eq_u32 s75, 10\ns_cbranch_scc1 K1c_done")
    reads(0, 0)
    mfmas(1)
    A("s_branch K1c_loop")
    A("K1c_done:")
    for m in range(3):
        for qq in range(4):
            A(f"ds_read_b128 {vr(CSR+16*m+4*qq,4)}, v7 offset:{128*m+32*qq}")
            A(f"ds_read_b128 {vr(B1R+16*m+4*qq,4)}, v7 offset:{384+128*m+32*qq}")
    mfmas(1)
    stamp(A, 3, NST1, STAMP, T+4, 12)
    A("s_nop 2")
    RS = 16; NM = 18; CA = 20; CB = 22; ONE = 24
    A(f"v_add_f32 v{SX}, v{SX}, v{SX+1}\nv_add_f32 v{SQ}, v{SQ}, v{SQ+1}")
    A(f"v_mov_b32 v{SX+1}, v{SX}\nv_mov_b32 v{SQ+1}, v{SQ}")
    A(f"v_mov_b32 v{CA}, 0xc0135761\nv_mov_b32 v{CA+1}, 0xc0135761")
    A(f"v_permlane32_swap_b32 v{SX}, v{SX+1}\nv_permlane32_swap_b32 v{SQ}, v{SQ+1}")
    A(f"v_mov_b32 v{CB}, 0xbdd2d3e8\nv_mov_b32 v{CB+1}, 0xbdd2d3e8")
    A(f"v_add_f32 v{SX}, v{SX}, v{SX+1}\nv_add_f32 v{SQ}, v{SQ}, v{SQ+1}")
    A(f"v_mul_f32 v{SX}, 0x3acccccd, v{SX}")
    A(f"v_mul_f32 v{SQ}, 0x3acccccd, v{SQ}")
    A(f"v_fma_f32 v{SQ}, -v{SX}, v{SX}, v{SQ}")
    A(f"v_add_f32 v{SQ}, 0x3727c5ac, v{SQ}")
    A(f"v_rsq_f32 v{RS}, v{SQ}")
    A(f"v_mov_b32 v{ONE}, 1.0\nv_mov_b32 v{ONE+1}, 1.0")
    A(f"v_mov_b32 v{RS+1}, v{RS}")
    A(f"v_mul_f32 v{NM}, -v{SX}, v{RS}" if False else f"v_mul_f32 v{NM}, v{SX}, v{RS}")
    A(f"v_sub_f32 v{NM}, 0, v{NM}")
    A(f"v_mov_b32 v{NM+1}, v{NM}")
    A("s_nop 7")
    A("s_waitcnt lgkmcnt(0)")
    Z = T; E = T + 8; O = 28
    for m in range(3):
        for half in range(2):
            q0 = 16*m + 8*half
            o = O + 4*half
            for p in range(4):
                A(f"v_pk_fma_f32 {vr(CSR+q0+2*p,2)}, {vr(CSR+q0+2*p,2)}, {vr(NM,2)}, {vr(B1R+q0+2*p,2)}")
            for p in range(4):
                A(f"v_pk_fma_f32 {vr(Z+2*p,2)}, {vr(ACC+q0+2*p,2)}, {vr(RS,2)}, {vr(CSR+q0+2*p,2)}")
            for p in range(4):
                A(f"v_pk_mul_f32 {vr(E+2*p,2)}, {vr(Z+2*p,2)}, {vr(Z+2*p,2)}")
            for p in range(4):
                A(f"v_pk_fma_f32 {vr(E+2*p,2)}, {vr(E+2*p,2)}, {vr(CB,2)}, {vr(CA,2)}")
            for p in range(4):
                A(f"v_pk_mul_f32 {vr(E+2*p,2)}, {vr(E+2*p,2)}, {vr(Z+2*p,2)}")
            for i in range(8):
                A(f"v_exp_f32 v{E+i}, v{E+i}")
            for p in range(4):
                A(f"v_pk_add_f32 {vr(E+2*p,2)}, {vr(E+2*p,2)}, {vr(ONE,2)}")
            for i in range(8):
                A(f"v_rcp_f32 v{E+i}, v{E+i}")
            for p in range(4):
                A(f"v_pk_mul_f32 {vr(E+2*p,2)}, {vr(E+2*p,2)}, {vr(Z+2*p,2)}")
            for p in range(4):
                A(f"v_cvt_pk_bf16_f32 v{o+p}, v{E+2*p}, v{E+2*p+1}")
            A(f"buffer_store_dwordx4 {vr(o,4)}, v3, s[12:15], s76 offen offset:{512*half}")
        if m < 2: A("s_add_u32 s76, s76, 4096")
    stamp(A, 4, NST1, STAMP, T+20, 12)
    if opt.stamps:
        A("s_waitcnt vmcnt(0)")
        stamp(A, 5, NST1, STAMP, T+20, 12)
    A("s_endpgm")

def gen_k1():
    A = Asm()
    A(KARG)
    A("s_cmp_ge_u32 s2, 256\ns_cbranch_scc1 K1_end")
    A("v_lshrrev_b32 v1, 6, v0\nv_and_b32 v0, 63, v0")
    A("s_and_b32 s64, s2, 7\ns_lshr_b32 s65, s2, 3")
    A("v_readfirstlane_b32 s3, v1")
    A("s_lshr_b32 s66, s65, 3\ns_and_b32 s67, s65, 7\ns_lshr_b32 s68, s64, 1\ns_lshl2_add_u32 s68, s68, s66")
    A("s_and_b32 s69, s64, 1\ns_lshl3_add_u32 s69, s69, s67")
    A("s_mov_b32 s95, 0x3f803f80")
    A("s_cmp_lt_u32 s3, 4\ns_cbranch_scc1 K1_comp")
    A("s_sub_u32 s3, s3, 4")
    A("s_mul_i32 s70, s66, 3\ns_add_u32 s70, s70, s67\ns_cmp_ge_u32 s70, 10\ns_cselect_b32 s71, 10, 0\ns_sub_u32 s70, s70, s71")
    A("v_lshrrev_b32 v1, 3, v0\nv_lshrrev_b32 v2, 4, v0\nv_and_b32 v3, 7, v0\nv_xor_b32 v3, v3, v2")
    A("v_mul_u32_u24 v1, 1280, v1\nv_lshl_add_u32 v4, v3, 4, v1\nv_xor_b32 v5, 64, v4")
    A(f"v_add_u32 v6, {16*1280-2048}, v4\nv_add_u32 v7, {24*1280-3072}, v5\nv_add_u32 v5, {8*1280-1024}, v5")
    A("s_movk_i32 s94, 2880\nv_lshlrev_b32 v3, 4, v0")
    for i in range(3):
        A(f"v_add_u32 v1, {64*i}, v0\nv_mul_u32_u24 v1, 171, v1\nv_lshrrev_b32 v1, 11, v1\nv_mad_u32_u24 v{8+i}, v1, s94, v3")
    A("s_movk_i32 s94, 960")
    A("s_lshl_b32 s72, s3, 12")
    A(f"s_mul_i32 s73, s3, 3072\ns_add_u32 s73, s73, {WB}")
    A("s_lshl2_add_u32 s74, s68, s3\ns_mul_i32 s74, s74, 40960")
    A("s_mul_i32 s75, s3, 49152\ns_mul_i32 s76, s69, 192\ns_add_u32 s75, s75, s76")
    A("s_lshl_b32 s78, s70, 7\ns_mul_i32 s79, s70, 196608")
    A("s_waitcnt lgkmcnt(0)")
    A.srd(4, 32, 2621440)
    A.srd(8, 48, 1966080)
    A.srd(12, 62, WS_SIZE)
    A("s_cmp_ge_u32 s65, 20\ns_cbranch_scc1 K1_ldW")
    A("s_cmp_eq_u32 s3, 3\ns_cbranch_scc1 K1_ldUg")
    k1_loader(A, False, True, "K1_ldUc")
    A("K1_ldUg:")
    k1_loader(A, True, True, "K1_ldUg")
    A("K1_ldW:")
    A("s_cmp_eq_u32 s3, 3\ns_cbranch_scc1 K1_ldWg")
    k1_loader(A, False, False, "K1_ldWc")
    A("K1_ldWg:")
    k1_loader(A, True, False, "K1_ldWg")
    A("K1_comp:")
    A("s_waitcnt lgkmcnt(0)")
    A.srd(12, 62, WS_SIZE)
    stamp(A, 0, NST1, STAMP, 200, 12)
    k1_compute(A)
    A("K1_end:")
    A("s_endpgm")
    return dict(name="gm_k1_kernel", grid=256, block=512, lds=K1_LDS, body=A.text(), vgpr=224)

if __name__ == "__main__":
    import argparse
    ap = argparse.ArgumentParser()
    ap.add_argument("-o", default="k.s")
    ap.add_argument("--only", default=None)
    ap.add_argument("--set", action="append", default=[])
    a = ap.parse_args()
    for s in a.set:
        k, v = s.split("="); setattr(opt, k, eval(v))
    ks = [gen_k1()]
    if a.only != "k1":
        from gen_k2 import gen_k2
        ks.append(gen_k2(sys.modules[__name__]))
    open(a.o, "w").write(build_file(ks))
```

```python
import sys
from gen_common import *

EOFF = 0
UR = 4096
YT = UR + 2621440
WF = YT + 2621440
HF = WF + 1966080
ST = HF + 6291456
FS = 4352
FH = ST + 32768
FU = FH + 32*FS
FW = FU + 40*FS
FY = FW + 16*FS
WS_SIZE = 0x10000000
TICK1 = 32 << 20
LIMIT = 0x8000

XB = 0; WB = 65536; PREP = 114688
CV = 21216; URL = 16640
YL = 84992
PL = YL + 10240
CS = PL + 61440
LDS_SIZE = CS + 768

class Asm:
    def __init__(self):
        self.L = []; self.vm = []
    def __call__(self, s):
        for ln in s.strip("\n").split("\n"):
            ln = ln.strip()
            if ln: self.L.append(ln)
    def vmem(self, s, tag):
        self.L.append(s); self.vm.append(tag)
    def wait_vm(self, tag):
        if tag not in self.vm: return
        idx = max(i for i, t in enumerate(self.vm) if t == tag)
        n = len(self.vm) - 1 - idx
        assert n <= 63
        self.L.append(f"s_waitcnt vmcnt({n})")
        self.vm = self.vm[idx+1:]
    def srd(self, d, src, size):
        self(f"s_mov_b32 s{d}, s{src}\ns_mov_b32 s{d+1}, s{src+1}\ns_mov_b32 s{d+2}, {size}\ns_mov_b32 s{d+3}, 0x20000")
    def text(self): return "\n".join(self.L)

def vr(a, n): return f"v[{a}:{a+n-1}]" if n > 1 else f"v{a}"

class Opt:
    ticks = False
    wpos = 1
    wout = 2
    upos = 2
    ustage = 2
    conv_prio = True
    uload = -1
    ucheck = 3
    wpre = (2, 2, 1)
opt = Opt()

TICKV = 255
def tick_init(A):
    if not opt.ticks: return
    A(f"v_mov_b32 v{TICKV}, 0")
    A(f"s_memtime s[90:91]\ns_waitcnt lgkmcnt(0)\nv_writelane_b32 v{TICKV}, s90, 60")
def tick(A, slot):
    if not opt.ticks: return
    A("s_memrealtime s[90:91]")
    A("s_waitcnt lgkmcnt(0)")
    A(f"v_writelane_b32 v{TICKV}, s90, {slot}")
def tick_cnt(A, sreg, slot):
    if not opt.ticks: return
    A(f"v_writelane_b32 v{TICKV}, s{sreg}, {slot}")
def tick_store(A, wavereg_off, vt):
    if not opt.ticks: return
    A(f"s_memtime s[90:91]\ns_waitcnt lgkmcnt(0)\nv_writelane_b32 v{TICKV}, s90, 61")
    tick(A, 62)
    A(f"s_lshl_b32 s92, s2, 3\ns_add_u32 s92, s92, s3\ns_add_u32 s92, s92, {wavereg_off}\ns_lshl_b32 s92, s92, 8\ns_add_u32 s92, s92, {TICK1}")
    A(f"v_lshlrev_b32 v{vt}, 2, v0")
    A(f"buffer_store_dword v{TICKV}, v{vt}, s[12:15], s92 offen")

NONCE = 96
def poll(A, lab, load, vchk, pre=None):
    A("s_mov_b32 s97, 0")
    if pre is not None:
        A.wait_vm(pre)
        A(f"v_cmp_ne_u32 vcc, s{NONCE}, v{vchk}")
        A("s_nop 1")
        A(f"s_cbranch_vccz {lab}_done")
    A(f"{lab}_loop:")
    A(load)
    A("s_add_u32 s97, s97, 1")
    A("s_waitcnt vmcnt(0)")
    A(f"v_cmp_ne_u32 vcc, s{NONCE}, v{vchk}")
    A(f"s_cmp_ge_u32 s97, {LIMIT}\ns_cbranch_scc1 {lab}_done")
    A(f"s_cbranch_vccnz {lab}_loop")
    A(f"{lab}_done:")
    if pre is None: A.vm = []

def mfma_order():
    rem = [(x, y) for x in range(8) for y in range(8) if x + y < 8]
    out = []
    while rem:
        cnt = {}
        for x, y in rem: cnt[x+y] = cnt.get(x+y, 0) + 1
        recent = [a+b for a, b in out[-3:]]
        cand = [p for p in rem if p[0]+p[1] not in recent] or rem
        cand.sort(key=lambda p: (-cnt[p[0]+p[1]], max(p)))
        out.append(cand[0]); rem.remove(cand[0])
    return out

def g1_loader(A, prepU, lab):
    A.vm = []
    VX = 4; VW = 8; T = 12
    KR = 40; VR_ = 62; SK = 80; PP = 24; FR = 140
    VWF = 246
    def issue(s):
        buf = s % 4
        A(f"s_add_u32 m0, s72, {buf*16384}")
        A("s_add_u32 s76, s74, s78")
        for i in range(4):
            A.vmem(f"buffer_load_dwordx4 v{VX+i}, s[4:7], s76 offen offset:{1024*i} lds", f"st{s}")
        A(f"s_add_u32 m0, s73, {buf*12288}")
        A("s_add_u32 s77, s75, s79")
        for i in range(3):
            A.vmem(f"buffer_load_dwordx4 v{VW+i}, s[8:11], s77 offen offset:{1024*i} lds", f"st{s}")
        if s < 9:
            A("s_add_u32 s78, s78, 128\ns_add_u32 s79, s79, 196608\ns_cmp_eq_u32 s78, 1280\ns_cselect_b32 s78, 0, s78\ns_cselect_b32 s79, 0, s79")
    def prep_loads():
        if prepU:
            A.srd(16, 34, 2621440)
            A.srd(20, 36, 2621440)
            A.srd(28, 38, 5120)
            A("s_cmp_ge_u32 s65, 10\ns_cselect_b32 s81, 1, 0\ns_cselect_b32 s82, 10, 0")
            A("s_lshl1_add_u32 s81, s64, s81")
            A("s_sub_u32 s82, s65, s82")
            A("s_lshl_b32 s83, s81, 2\ns_add_u32 s83, s83, s3\ns_lshl_b32 s83, s83, 2")
            A(f"v_add_u32 v{T}, s83, v2")
            A(f"v_and_b32 v{T+1}, 15, v0")
            A(f"v_mul_u32_u24 v{T+2}, 10240, v{T}")
            A(f"v_lshl_add_u32 v{T+2}, v{T+1}, 3, v{T+2}")
            A("s_lshl_b32 s84, s82, 7")
            A(f"v_add_u32 v{T+2}, s84, v{T+2}")
            A(f"v_subrev_u32 v{T+3}, 3840, v{T+2}")
            A(f"v_cmp_eq_u32 vcc, 0, v{T}")
            A(f"v_mov_b32 v{T+4}, 0x80000000")
            A(f"v_lshlrev_b32 v{T+5}, 5, v{T+1}")
            A(f"v_cndmask_b32 v{T+3}, v{T+3}, v{T+4}, vcc")
            A("s_lshl_b32 s84, s82, 9")
            A("s_movk_i32 s85, 3840\ns_movk_i32 s86, 7680")
            A.vmem(f"buffer_load_dwordx4 {vr(SK,4)}, v{T+5}, s[28:31], s84 offen", "prep")
            A.vmem(f"buffer_load_dwordx4 {vr(SK+4,4)}, v{T+5}, s[28:31], s84 offen offset:16", "prep")
            for r in range(3):
                A.vmem(f"buffer_load_dwordx2 {vr(KR+2*r,2)}, v{T+3}, s[16:19], 0 offen offset:{1280*r}", "prep")
            for r in range(8):
                so = ["0", "s85", "s86"][r // 3]
                A.vmem(f"buffer_load_dwordx2 {vr(KR+6+2*r,2)}, v{T+2}, s[16:19], {so} offen offset:{1280*(r%3)}", "prep")
            for r in range(8):
                so = ["0", "s85", "s86"][r // 3]
                A.vmem(f"buffer_load_dwordx2 {vr(VR_+2*r,2)}, v{T+2}, s[20:23], {so} offen offset:{1280*(r%3)}", "prep")
            A(f"v_mul_u32_u24 v{PP}, 272, v{T+1}")
            A(f"v_lshlrev_b32 v{T}, 4, v2")
            A(f"v_sub_u32 v{PP}, v{PP}, v{T}")
            A(f"s_lshl_b32 s84, s3, 6\ns_sub_u32 s84, {PREP+240}, s84")
            A(f"v_add_u32 v{PP}, s84, v{PP}")
            A(f"v_mul_u32_u24 v{PP+1}, 272, v2")
            A(f"v_lshl_add_u32 v{PP+1}, v{T+1}, 4, v{PP+1}")
            A(f"s_mul_i32 s84, s3, {16*272}\ns_add_u32 s84, s84, {PREP}")
            A(f"v_add_u32 v{PP+1}, s84, v{PP+1}")
            A(f"v_lshlrev_b32 v{PP+2}, 14, v2")
            A(f"v_lshl_add_u32 v{PP+2}, v{T+1}, 4, v{PP+2}")
            A(f"s_lshl_b32 s84, s82, 6\ns_add_u32 s84, s84, s3\ns_lshl_b32 s84, s84, 12")
            A(f"s_lshl_b32 s85, s81, 8\ns_sub_u32 s85, {UR+3840}, s85\ns_add_u32 s87, s84, s85")
            A("s_mov_b32 s88, 0x05040100\ns_mov_b32 s89, 0x07060302")
            A(f"s_lshl2_add_u32 s84, s82, s3\ns_mul_i32 s84, s84, {FS}\ns_lshl2_add_u32 s84, s81, s84\ns_add_u32 s80, s84, {FU}")
        else:
            A.srd(16, 52, 1966080)
            A("s_mul_i32 s81, s64, 12\ns_add_u32 s81, s81, s65\ns_sub_u32 s81, s81, 20")
            A("s_mul_i32 s82, s81, 20480\ns_mul_i32 s83, s3, 320\ns_add_u32 s82, s82, s83")
            A(f"s_mul_i32 s83, s3, 5120\ns_add_u32 s83, s83, {PREP}")
            A(f"v_lshlrev_b32 v{T+1}, 4, v0")
            for n in range(5):
                A(f"v_add_u32 v{T}, {64*n}, v0")
                A(f"v_mul_u32_u24 v{T}, 205, v{T}")
                A(f"v_lshrrev_b32 v{T}, 12, v{T}")
                if n == 0: A("s_mov_b32 m0, s83")
                if n == 4: A(f"s_add_u32 m0, s83, 4096\ns_add_u32 s82, s82, 4096")
                A(f"v_mad_u32_u24 v{T}, v{T}, s94, v{T+1}")
                A.vmem(f"buffer_load_dwordx4 v{T}, s[16:19], s82 offen offset:{1024*(n%4)} lds", "prep")
            A(f"v_lshrrev_b32 v{T}, 5, v0")
            A(f"v_bfe_u32 v{T+1}, v0, 2, 2")
            A(f"v_lshl_add_u32 v{T+1}, v{T}, 2, v{T+1}")
            A(f"v_mul_u32_u24 v{PP}, 320, v{T+1}")
            A(f"v_and_b32 v{T+1}, 1, v2")
            A(f"v_mul_u32_u24 v{T+2}, 160, v{T+1}")
            A(f"v_and_b32 v{T+3}, 3, v0")
            A(f"v_mul_u32_u24 v{T+3}, 40, v{T+3}")
            A(f"v_add_u32 v{T+2}, v{T+3}, v{T+2}")
            A(f"v_add3_u32 v{PP}, v{PP}, v{T+2}, s83")
            A(f"v_mul_u32_u24 v{PP+1}, 245760, v{T+1}")
            A(f"v_lshl_add_u32 v{PP+1}, v{T}, 8, v{PP+1}")
            A(f"v_and_b32 v{T+3}, 15, v0")
            A(f"v_lshl_add_u32 v{PP+1}, v{T+3}, 4, v{PP+1}")
            A(f"s_mul_i32 s84, s3, 491520\ns_lshr_b32 s85, s81, 1\ns_mul_i32 s85, s85, 5120\ns_add_u32 s84, s84, s85")
            A(f"s_and_b32 s85, s81, 1\ns_lshl_b32 s85, s85, 9\ns_add_u32 s84, s84, s85\ns_add_u32 s87, s84, {WF}\ns_add_u32 s88, s87, 4096")
            A(f"s_lshr_b32 s84, s64, 1\ns_lshl2_add_u32 s84, s3, s84\ns_mul_i32 s84, s84, {FS}")
            A(f"s_and_b32 s85, s64, 1\ns_mul_i32 s85, s85, 12\ns_add_u32 s85, s85, s65\ns_lshl2_add_u32 s84, s85, s84\ns_add_u32 s80, s84, {FW-80}")
    def prepU_chan(e):
        d = e >> 1; hf = e & 1
        sel = "s89" if hf else "s88"
        P = FR; K = FR + 10; O = FR + 18
        for t in range(-2, 8):
            A(f"v_perm_b32 v{P+t+2}, v{KR+2*(t+2)+d}, v{KR+2*(t+3)+d}, {sel}")
        for t in range(8):
            A(f"v_dot2_f32_bf16 v{K+t}, v{P+t}, v{SK+2*e+1}, 0")
        for t in range(8):
            A(f"v_dot2c_f32_bf16 v{K+t}, v{P+t+2}, v{SK+2*e}")
        for t in range(8):
            if hf: A(f"v_and_b32 v{P+t}, 0xffff0000, v{VR_+2*t+d}")
            else: A(f"v_lshlrev_b32 v{P+t}, 16, v{VR_+2*t+d}")
        for t in range(8):
            A(f"v_mul_f32 v{K+t}, v{K+t}, v{P+t}")
        for i in range(4):
            A(f"v_cvt_pk_bf16_f32 v{O+i}, v{K+7-2*i}, v{K+6-2*i}")
        A(f"ds_write_b128 v{PP}, {vr(O,4)} offset:{e*16*272}")
    def prepU_out():
        for n in range(4):
            A(f"ds_read_b128 {vr(FR+4*n,4)}, v{PP+1} offset:{n*4*272}")
        for n in range(4):
            A(f"s_waitcnt lgkmcnt({3-n})")
            A.vmem(f"buffer_store_dwordx4 {vr(FR+4*n,4)}, v{PP+2}, s[12:15], s87 offen sc1", "pst")
            if n < 3: A("s_add_u32 s87, s87, 65536")
    def prepW_out():
        for n in range(5):
            for h in range(2):
                A(f"ds_read_b64_tr_b16 {vr(FR+4*n+2*h,2)}, v{PP} offset:{h*2560+8*n}")
        for n in range(5):
            A(f"s_waitcnt lgkmcnt({8-2*n})")
            A.vmem(f"buffer_store_dwordx4 {vr(FR+4*n,4)}, v{PP+1}, s[12:15], {'s88' if n == 4 else 's87'} offen offset:{1024*(n%4)} sc1", "pst")
    flagged = [False]
    def flag(force=False):
        if flagged[0] or not stored[0]: return
        if "pst" in A.vm:
            if not force: return
            A.wait_vm("pst")
        flagged[0] = True
        A(f"v_mov_b32 v{T}, 0\nv_mov_b32 v{T+1}, s{NONCE}")
        A.vmem(f"buffer_store_dword v{T+1}, v{T}, s[12:15], s80 offen sc1", "flag")
        tick(A, 31)
    stored = [False]
    pos = opt.upos if prepU else opt.wpos
    tick(A, 1)
    for s in range(2):
        if pos == s: prep_loads()
        issue(s)
    if pos == 2: prep_loads()
    A("s_and_b32 s84, s65, 3\ns_mul_i32 s84, s84, 3\ns_lshr_b32 s85, s65, 2\ns_add_u32 s84, s84, s85\ns_cmp_ge_u32 s84, 12\ns_cselect_b32 s85, 12, 0\ns_sub_u32 s84, s84, s85")
    A(f"s_mul_i32 s98, s70, 196608\ns_mul_i32 s85, s3, {12*4096}\ns_add_u32 s98, s98, s85\ns_add_u32 s98, s98, {HF}")
    A(f"s_mul_i32 s99, s71, 245760\ns_mul_i32 s85, s3, {12*5120}\ns_add_u32 s99, s99, s85\ns_add_u32 s99, s99, {WF}")
    A("s_lshl_b32 s100, s84, 12\ns_mul_i32 s101, s84, 5120")
    A(f"s_lshr_b32 s93, s71, 1\ns_lshl2_add_u32 s93, s93, s3\ns_mul_i32 s93, s93, {FS}\ns_add_u32 s93, s93, {FW}")
    A(f"v_min_u32 v{VWF+1}, 23, v0\nv_lshlrev_b32 v{VWF+1}, 2, v{VWF+1}")
    A("v_lshlrev_b32 v1, 4, v0\nv_add_u32 v3, 4096, v1")
    A("s_waitcnt lgkmcnt(0)")
    A(f"s_add_u32 s{NONCE}, s{NONCE}, 0x9e3779b9")
    wfl = f"buffer_load_dword v{VWF}, v{VWF+1}, s[12:15], s93 offen sc1"
    tick(A, 2)
    nw = [0]
    def wissue(n):
        for _ in range(n):
            g2_wissue(A, nw[0]); nw[0] += 1
    for s in range(10):
        A.wait_vm(f"st{s}")
        tick(A, 10 + s)
        A("s_barrier")
        tick(A, 20 + s)
        if s == 6: A.vmem(wfl, "wfl")
        if s + 2 < 10: issue(s + 2)
        if pos == s + 3: prep_loads()
        flag()
        if prepU:
            us = opt.ustage
            if s == us: A.wait_vm("prep")
            if us <= s < us + 4:
                A("s_nop 2")
                prepU_chan(s - us)
                if s == us + 3: A("s_waitcnt lgkmcnt(0)")
            if s == us + 4: prepU_out(); stored[0] = True
        else:
            if s == opt.wout:
                A.wait_vm("prep")
                prepW_out(); stored[0] = True
        if s == 8:
            poll(A, lab + "_wp", wfl, VWF, pre="wfl")
            tick_cnt(A, 97, 58)
            wissue(opt.wpre[0])
        if s == 9:
            flag(True)
            wissue(opt.wpre[1])
    assert flagged[0]
    tick(A, 30)
    A("s_barrier")
    wissue(opt.wpre[2])
    assert nw[0] == 5

WREG = 16; HREG = 116; GACC = 164
def g2_wissue(A, s):
    b = WREG + 20*(s % 5)
    A("s_add_u32 s81, s99, s101")
    for m in range(5):
        A.vmem(f"buffer_load_dwordx4 {vr(b+4*m,4)}, v{3 if m == 4 else 1}, s[12:15], s81 offen offset:{1024*(m%4)}", f"w{s}")
    if s < 11:
        A(f"s_add_u32 s101, s101, 5120\ns_cmp_eq_u32 s101, {12*5120}\ns_cselect_b32 s101, 0, s101")

def g1_gemm2(A):
    VH = 4
    T = 8
    A.srd(16, 54, 1280)
    A.srd(24, 58, 2621440)
    A(f"v_mul_u32_u24 v{T}, 40, v2")
    A("s_mul_i32 s82, s71, 160")
    A(f"buffer_load_dwordx4 {vr(HREG,4)}, v{T}, s[16:19], s82 offen")
    A(f"buffer_load_dwordx4 {vr(HREG+4,4)}, v{T}, s[16:19], s82 offen offset:16")
    A(f"buffer_load_dwordx2 {vr(HREG+8,2)}, v{T}, s[16:19], s82 offen offset:32")
    A(f"v_and_b32 v{T+2}, 15, v0\nv_mul_u32_u24 v{T+1}, 1280, v{T+2}\nv_add_u32 v{T+1}, v{T+1}, v{T}")
    A(f"s_lshl2_add_u32 s83, s70, s3\ns_mul_i32 s84, s83, {16*1280}\ns_add_u32 s82, s82, s84")
    A(f"v_lshlrev_b32 v{T+2}, 4, v{T+2}")
    A(f"s_lshl_b32 s83, s83, 8\ns_add_u32 s83, s83, {ST}")
    for j in range(4):
        A(f"s_xor_b32 s84, s3, {j}\ns_lshl_b32 s84, s84, 10\nv_add_u32 v{VH+j}, s84, v1")
    A(f"s_mul_i32 s84, s70, {FS}\ns_lshl_b32 s85, s3, 5\ns_add_u32 s84, s84, s85\ns_add_u32 s84, s84, {FH}")
    A(f"v_and_b32 v{T+3}, 7, v0\nv_lshlrev_b32 v{T+3}, 2, v{T+3}")
    A("s_waitcnt vmcnt(0)")
    for i in range(10):
        A(f"v_lshlrev_b32 v{GACC+2*i}, 16, v{HREG+i}\nv_and_b32 v{GACC+2*i+1}, 0xffff0000, v{HREG+i}")
    tick(A, 32)
    poll(A, "G1_hp", f"buffer_load_dword v{T+4}, v{T+3}, s[12:15], s84 offen sc1", T+4)
    tick(A, 33)
    tick_cnt(A, 97, 63)
    A.vm = []
    def hissue(s):
        b = HREG + 16*(s % 3)
        A("s_add_u32 s80, s98, s100")
        for j in range(4):
            A.vmem(f"buffer_load_dwordx4 {vr(b+4*j,4)}, v{VH+j}, s[12:15], s80 offen", f"h{s}")
        if s < 11:
            A(f"s_add_u32 s100, s100, 4096\ns_cmp_eq_u32 s100, {12*4096}\ns_cselect_b32 s100, 0, s100")
    for s in range(3): hissue(s)
    for j in range(1, 4):
        A(f"s_xor_b32 s84, s3, {j}\ns_mul_i32 s84, s84, 15360\ns_add_u32 s84, s84, {PL+(j-1)*5120}\nv_add_u32 v{10+j}, s84, v1")
    A(f"s_mul_i32 s84, s3, 15360\ns_add_u32 s84, s84, {PL}\nv_add_u32 v14, s84, v1")
    A(f"v_bfe_u32 v244, v0, 2, 2\nv_mad_u32_u24 v15, v2, 20, v244\nv_lshrrev_b32 v244, 1, v15\nv_xor_b32 v244, s3, v244\nv_and_b32 v244, 3, v244")
    A(f"v_lshlrev_b32 v15, 7, v15\nv_lshl_add_u32 v15, v244, 5, v15\nv_and_b32 v244, 3, v0\nv_lshl_add_u32 v15, v244, 3, v15\nv_add_u32 v15, {YL}, v15\nv_xor_b32 v244, 64, v15")
    QR = WREG + 40
    SR = QR + 12
    QG = WREG + 60
    OM = WREG + 56
    stl = f"buffer_load_dwordx4 {vr(SR,4)}, v{T+2}, s[12:15], s83 offen sc1"
    for s in range(12):
        wb = WREG + 20*(s % 5); hb = HREG + 16*(s % 3)
        if f"w{s}" in A.vm and A.vm.index(f"w{s}") > A.vm.index(f"h{s}"): A.wait_vm(f"w{s}")
        A.wait_vm(f"h{s}")
        tick(A, 34 + s)
        for j in range(4):
            for m in range(5):
                acc = vr(GACC+4*(5*j+m), 4)
                A(f"v_mfma_f32_16x16x32_bf16 {acc}, {vr(wb+4*m,4)}, {vr(hb+4*j,4)}, {acc if (s or j == 0) else 0}")
        if s + 3 < 12: hissue(s + 3)
        if s + 5 < 12: g2_wissue(A, s + 5)
        if s == 7:
            A.vmem(f"buffer_load_dwordx4 {vr(QR,4)}, v{T+1}, s[4:7], s82 offen", "q")
            A.vmem(f"buffer_load_dwordx4 {vr(QR+4,4)}, v{T+1}, s[4:7], s82 offen offset:16", "q")
            A.vmem(f"buffer_load_dwordx2 {vr(QR+8,2)}, v{T+1}, s[4:7], s82 offen offset:32", "q")
            A.vmem(stl, "q")
        if s == 10:
            poll(A, "G1_sp", stl, SR+3, pre="q")
            for i in range(10):
                A(f"v_lshlrev_b32 v{QG+2*i}, 16, v{QR+i}\nv_and_b32 v{QG+2*i+1}, 0xffff0000, v{QR+i}")
            A(f"v_sub_f32 v{OM}, 1.0, v{SR+2}\nv_sub_f32 v{OM+1}, 1.0, v{SR+2}\nv_mov_b32 v{SR+3}, v{SR+2}")
            for i in range(10):
                A(f"v_pk_mul_f32 {vr(QG+2*i,2)}, {vr(QG+2*i,2)}, {vr(SR+2,2)}")
    tick(A, 46)
    for j in range(1, 4):
        if j == 3: A("s_nop 7")
        for m in range(5):
            A(f"ds_write_b128 v{10+j}, {vr(GACC+4*(5*j+m),4)} offset:{1024*m}")
    A("s_waitcnt lgkmcnt(0)")
    tick(A, 47)
    A("s_barrier")
    tick(A, 48)
    PR = GACC + 20
    YR = HREG
    for m in range(5):
        A(f"ds_read_b64_tr_b16 {vr(YR+2*m,2)}, v{244 if m & 1 else 15} offset:{512*m}")
    for j in range(3):
        for m in range(5):
            A(f"ds_read_b128 {vr(PR+20*j+4*m,4)}, v14 offset:{5120*j+1024*m}")
    A("s_waitcnt lgkmcnt(15)")
    YU = HREG + 10
    for i in range(10):
        A(f"v_lshlrev_b32 v{YU+2*i}, 16, v{YR+i}\nv_and_b32 v{YU+2*i+1}, 0xffff0000, v{YR+i}")
    for i in range(10):
        A(f"v_pk_mul_f32 {vr(YU+2*i,2)}, {vr(YU+2*i,2)}, {vr(QG+2*i,2)}")
    for j in range(3):
        A(f"s_waitcnt lgkmcnt({10-5*j})")
        for i in range(10):
            A(f"v_pk_add_f32 {vr(GACC+2*i,2)}, {vr(GACC+2*i,2)}, {vr(PR+20*j+2*i,2)}")
    for i in range(10):
        A(f"v_pk_fma_f32 {vr(GACC+2*i,2)}, {vr(GACC+2*i,2)}, {vr(OM,2)}, {vr(YU+2*i,2)}")
    for i in range(10):
        A(f"v_cvt_pk_bf16_f32 v{YR+i}, v{GACC+2*i}, v{GACC+2*i+1}")
        if i == 3: A(f"buffer_store_dwordx4 {vr(YR,4)}, v{T+1}, s[24:27], s82 offen")
        if i == 7: A(f"buffer_store_dwordx4 {vr(YR+4,4)}, v{T+1}, s[24:27], s82 offen offset:16")
        if i == 9: A(f"buffer_store_dwordx2 {vr(YR+8,2)}, v{T+1}, s[24:27], s82 offen offset:32")
    if opt.ticks:
        tick(A, 49)
        A("s_waitcnt vmcnt(0)")
        tick(A, 50)
        tick_store(A, 4, 250)
    A("s_endpgm")

def g0(A):
    A.vm = []
    VA = 4
    VB = 8
    STR = 12
    SET = [16, 32, 48, 64]
    ACC = 80
    CSA = 128; ONES = 132
    CSR = 132; B1R = 180
    KW = 228; VD = 252; VUF = 253
    T = 136
    Q = 140; GWR = 150; B1V = 160
    A("v_and_b32 v1, 31, v0\nv_lshrrev_b32 v2, 5, v0")
    A(f"v_lshlrev_b32 v{T}, 4, v1\nv_lshlrev_b32 v{T+1}, 3, v1")
    A(f"v_mul_u32_u24 v{T+2}, 1280, v2\nv_add_u32 v{T+3}, v{T+2}, v{T+1}\nv_add_u32 v{T+2}, v{T+2}, v{T}")
    A("s_lshl4_add_u32 s72, s68, s69\ns_lshl2_add_u32 s72, s72, s3")
    A("s_mul_i32 s73, s72, 2560")
    A("s_cmp_eq_u32 s3, 3\ns_cselect_b32 s78, 0, s3")
    A("s_mul_i32 s74, s69, 192\ns_lshl_b32 s75, s78, 6\ns_add_u32 s74, s74, s75")
    A(f"v_lshlrev_b32 v{T+4 if False else 161}, 1, v1")
    A("s_waitcnt lgkmcnt(0)")
    A(f"s_load_dword s{NONCE}, s[62:63], {EOFF}")
    A.srd(4, 32, 2621440)
    A.srd(8, 56, 1280)
    A.vmem(f"buffer_load_dwordx4 {vr(Q,4)}, v{T+2}, s[4:7], s73 offen", "sq")
    A.vmem(f"buffer_load_dwordx4 {vr(Q+4,4)}, v{T+2}, s[4:7], s73 offen offset:512", "sq")
    A.vmem(f"buffer_load_dwordx2 {vr(Q+8,2)}, v{T+3}, s[4:7], s73 offen offset:1024", "sq")
    A.vmem(f"buffer_load_dwordx4 {vr(GWR,4)}, v{T}, s[8:11], 0 offen", "sq")
    A.vmem(f"buffer_load_dwordx4 {vr(GWR+4,4)}, v{T}, s[8:11], 0 offen offset:512", "sq")
    A.vmem(f"buffer_load_dwordx2 {vr(GWR+8,2)}, v{T+1}, s[8:11], 0 offen offset:1024", "sq")
    A.srd(16, 50, 3072)
    A.srd(12, 62, WS_SIZE)
    A.vmem(f"buffer_load_ushort v{B1V}, v161, s[16:19], s74 offen", "sq")
    tick(A, 1)
    A(f"v_bfe_u32 v{T+1}, v0, 2, 2\nv_lshl_add_u32 v{T+1}, v2, 3, v{T+1}")
    A(f"v_mul_u32_u24 v{VA}, 192, v{T+1}")
    A(f"v_bfe_u32 v{T+1}, v0, 4, 1\nv_lshl_add_u32 v{VA}, v{T+1}, 5, v{VA}")
    A(f"v_and_b32 v{T+2}, 3, v0\nv_lshl_add_u32 v{VA}, v{T+2}, 3, v{VA}")
    A("s_add_u32 s79, s78, 1\ns_cmp_eq_u32 s79, 3\ns_cselect_b32 s79, 0, s79")
    A("s_add_u32 s80, s79, 1\ns_cmp_eq_u32 s80, 3\ns_cselect_b32 s80, 0, s80")
    for i in (2, 1, 0):
        A(f"s_lshl_b32 s75, s{78+i}, 6\ns_add_u32 s75, s75, {WB}\nv_add_u32 v{VA+i}, s75, v{VA}")
    A(f"v_bfe_u32 v{T+2}, v0, 1, 3\nv_xor_b32 v{T+2}, v{T+2}, v2")
    A(f"v_lshlrev_b32 v{T+3}, 7, v1")
    A(f"v_lshl_add_u32 v{VB}, v{T+2}, 4, v{T+3}")
    A(f"s_lshl_b32 s75, s3, 12\nv_add_u32 v{VB}, s75, v{VB}")
    for j in range(1, 4): A(f"v_xor_b32 v{VB+j}, {32*j}, v{VB}")
    A(f"v_and_b32 v{T+2}, 15, v0\nv_cmp_eq_u32 vcc, v{T+2}, v{T+1}\nv_mov_b32 v{T+3}, 0x3f803f80")
    A(f"v_mov_b32 v{CSA}, 0\nv_mov_b32 v{CSA+1}, 0")
    for i in range(4): A(f"v_cndmask_b32 v{ONES+i}, 0, v{T+3}, vcc")
    A(f"v_mov_b32 v{CSA+2}, 0\nv_mov_b32 v{CSA+3}, 0")
    for i in range(48): A(f"v_mov_b32 v{ACC+i}, 0")
    A(f"v_lshlrev_b32 v3, 10, v{T+1}\nv_lshl_add_u32 v3, v2, 8, v3\nv_lshl_add_u32 v3, v{T+2}, 4, v3")
    A("s_lshr_b32 s76, s3, 1\ns_lshl1_add_u32 s81, s68, s76\ns_mul_i32 s76, s81, 196608")
    A("s_mul_i32 s77, s69, 12288\ns_add_u32 s76, s76, s77\ns_and_b32 s77, s3, 1\ns_lshl_b32 s82, s77, 11\ns_add_u32 s76, s76, s82")
    A(f"s_add_u32 s76, s76, {HF}")
    A(f"s_mul_i32 s81, s81, {FS}\ns_lshl1_add_u32 s77, s69, s77\ns_lshl2_add_u32 s81, s77, s81\ns_add_u32 s81, s81, {FH}")
    A("s_mov_b32 s73, 0\ns_mov_b32 s95, 0x3f803f80\ns_mov_b32 s98, -49152\ns_mov_b32 s99, -36864")
    A("v_mov_b32 v162, 0\nv_mov_b32 v163, 0\nv_mov_b32 v164, 0")
    def rd(j, k):
        b = SET[j]
        if k == 0: return f"ds_read_b128 {vr(b,4)}, v{VB+j}"
        m = (k-1) >> 1; h = (k-1) & 1
        return f"ds_read_b64_tr_b16 {vr(b+4+4*m+2*h,2)}, v{VA+m} offset:{(16*j+4*h)*192}"
    A("s_waitcnt lgkmcnt(0)")
    A(f"s_add_u32 s{NONCE}, s{NONCE}, 0x9e3779b9")
    tick(A, 2)
    A("s_barrier")
    tick(A, 20)
    for j in range(2):
        for k in range(7): A(rd(j, k))
    A.wait_vm("sq")
    SX = 162; SQ = 163; SG = 164
    for i in range(10):
        A(f"v_dot2c_f32_bf16 v{SX}, s95, v{Q+i}\nv_dot2c_f32_bf16 v{SQ}, v{Q+i}, v{Q+i}\nv_dot2c_f32_bf16 v{SG}, v{Q+i}, v{GWR+i}")
    A(f"v_lshlrev_b32 v{B1V}, 16, v{B1V}")
    A(f"s_lshl_b32 s75, s78, 7\ns_add_u32 s75, s75, {CS}")
    A(f"v_lshlrev_b32 v{T}, 2, v1\nv_add_u32 v{T}, s75, v{T}")
    A(f"ds_write_b32 v{T}, v{B1V} offset:384")
    for dpp in ("quad_perm:[1,0,3,2] row_mask:0xf bank_mask:0xf", "quad_perm:[2,3,0,1] row_mask:0xf bank_mask:0xf",
                "row_half_mirror row_mask:0xf bank_mask:0xf", "row_mirror row_mask:0xf bank_mask:0xf",
                "row_bcast:15 row_mask:0xa bank_mask:0xf"):
        for r in (SX, SQ, SG):
            A(f"v_add_f32_dpp v{r}, v{r}, v{r} {dpp}")
    R = 168
    A(f"v_mul_f32 v{SX}, 0x3acccccd, v{SX}\nv_mul_f32 v{SQ}, 0x3acccccd, v{SQ}\nv_mul_f32 v{SG}, 0xbfb8aa3b, v{SG}")
    A(f"v_fma_f32 v{SQ}, -v{SX}, v{SX}, v{SQ}")
    A(f"v_exp_f32 v{SG}, v{SG}")
    A(f"v_max_f32 v{SQ}, 0, v{SQ}")
    A(f"v_add_f32 v{SQ}, 0x3727c5ac, v{SQ}")
    A(f"v_add_f32 v{SG}, 1.0, v{SG}")
    A(f"v_rsq_f32 v{R}, v{SQ}")
    A(f"v_rcp_f32 v{R+2}, v{SG}")
    A(f"v_mov_b32 v{R+3}, s{NONCE}")
    A(f"v_mul_f32 v{R+1}, -1.0, v{SX}" if False else f"v_sub_f32 v{SX}, 0, v{SX}")
    A(f"v_mul_f32 v{R+1}, v{SX}, v{R}")
    A(f"v_lshlrev_b32 v{T+1}, 4, v2")
    A(f"s_lshl_b32 s72, s72, 5\ns_add_u32 s72, s72, {ST}")
    A("s_mov_b32 exec_lo, 0x80000000\ns_mov_b32 exec_hi, 0x80000000")
    A.vmem(f"buffer_store_dwordx4 {vr(R,4)}, v{T+1}, s[12:15], s72 offen sc1", "rec")
    A("s_mov_b64 exec, -1")
    A(f"v_lshlrev_b32 v7, 6, v0\nv_and_b32 v7, 64, v7\nv_and_b32 v{T+1}, 48, v0\nv_add3_u32 v7, v7, v{T+1}, s75")
    A("s_cmp_ge_u32 s65, 20\ns_cbranch_scc1 G0_nok")
    A("s_mul_i32 s83, s64, 20\ns_add_u32 s83, s83, s65\ns_lshl2_add_u32 s83, s83, s3")
    A("s_lshl_b32 s84, s83, 12")
    A("s_add_u32 s20, s40, s84\ns_addc_u32 s21, s41, 0\ns_movk_i32 s22, 4096\ns_mov_b32 s23, 0x20000")
    A.srd(24, 42, 1280)
    A(f"v_lshlrev_b32 v{T}, 4, v0\ns_lshl_b32 s85, s83, 1\nv_mov_b32 v{T+1}, 0")
    for n in range(4):
        A(f"buffer_load_dwordx4 {vr(KW+6*n,4)}, v{T}, s[20:23], 0 offen offset:{1024*n}")
        A(f"buffer_load_dwordx2 {vr(KW+6*n+4,2)}, v{T}, s[20:23], 0 offen offset:{1024*n+16}")
    A(f"buffer_load_ushort v{VD}, v{T+1}, s[24:27], s85 offen")
    A("G0_nok:")
    tick(A, 3)
    if opt.ticks: pass
    first = [True]
    def stage(last):
        for j in range(4):
            b = SET[j]
            doread = not (last and j >= 2)
            if j == 2 and not last:
                A("s_add_u32 s73, s73, 1\ns_and_b32 s74, s73, 3\ns_cselect_b32 s74, 16384, s98\ns_cselect_b32 s75, 12288, s99")
                for i in range(3): A(f"v_add_u32 v{VA+i}, s75, v{VA+i}")
                for i in range(4): A(f"v_add_u32 v{VB+i}, s74, v{VB+i}")
                A("s_barrier")
            A(f"s_waitcnt lgkmcnt({0 if (last and j == 3) else 7})")
            jn = (j + 2) & 3
            rds = [rd(jn, k) for k in range(7)] if doread else []
            cs = f"v_mfma_f32_16x16x32_bf16 {vr(CSA,4)}, {vr(b+4,4)}, {vr(ONES,4)}, {vr(CSA,4)}"
            if last and j == 3: A(cs)
            for m in range(3):
                A(f"v_mfma_f32_32x32x16_bf16 {vr(ACC+16*m,16)}, {vr(b+4+4*m,4)}, {vr(b,4)}, {vr(ACC+16*m,16)}")
                for r in rds[[0, 3, 5][m]:[3, 5, 7][m]]: A(r)
                if last and j == 0 and m == 0:
                    A(f"v_lshlrev_b32 v{T}, 4, v1")
                    A(f"s_lshl2_add_u32 s72, s68, s3\ns_lshl_b32 s72, s72, 9\ns_add_u32 s72, s72, {ST}")
                    A(f"buffer_load_dwordx4 {vr(STR,4)}, v{T}, s[12:15], s72 offen sc1")
                if last and j == 3 and m == 2:
                    A("s_mov_b32 exec_lo, 0x00030003\ns_mov_b32 exec_hi, 0x00030003")
                    A(f"ds_write_b128 v7, {vr(CSA,4)}")
                    A("s_mov_b64 exec, -1")
            if not (last and j == 3): A(cs)
    A("s_waitcnt lgkmcnt(0)")
    A("G0_loop:")
    stage(False)
    A("s_cmp_lt_u32 s73, 9\ns_cbranch_scc1 G0_loop")
    stage(True)
    A(f"v_lshlrev_b32 v7, 4, v2\nv_add_u32 v7, {CS}, v7")
    for i in range(3):
        A(f"s_lshl_b32 s75, s{78+i}, 7\nv_add_u32 v{VA+i}, s75, v7")
    A("s_waitcnt lgkmcnt(0)")
    tick(A, 4)
    A("s_barrier")
    tick(A, 5)
    for m in range(3):
        for qq in range(4):
            A(f"ds_read_b128 {vr(CSR+16*m+4*qq,4)}, v{VA+m} offset:{32*qq}")
            A(f"ds_read_b128 {vr(B1R+16*m+4*qq,4)}, v{VA+m} offset:{384+32*qq}")
    TT = 50
    A(f"v_lshlrev_b32 v{TT}, 4, v1")
    A.vm = ["x"]
    poll(A, "G0_sp", f"buffer_load_dwordx4 {vr(STR,4)}, v{TT}, s[12:15], s72 offen sc1", STR+3, pre="x")
    A("s_min_u32 s85, s65, 19\ns_mul_i32 s86, s64, 20\ns_add_u32 s85, s85, s86\ns_lshr_b32 s85, s85, 4\ns_lshl2_add_u32 s85, s85, s3")
    A(f"s_mul_i32 s85, s85, {FS}\ns_add_u32 s85, s85, {FU}")
    A(f"v_and_b32 v{TT+1}, 15, v0\nv_lshlrev_b32 v{TT+1}, 2, v{TT+1}")
    ufl = f"buffer_load_dword v{VUF}, v{TT+1}, s[12:15], s85 offen sc1"
    A.vm = []
    def udma():
        A("s_cmp_ge_u32 s65, 20\ns_cbranch_scc1 G0_nou")
        poll(A, "G0_up", ufl, VUF, pre="ufl")
        tick_cnt(A, 97, 58)
        A(f"s_mul_i32 s86, s3, {CV}")
        A(f"s_add_u32 m0, s86, {URL}")
        A(f"s_add_u32 s87, s84, {UR}")
        A(f"v_lshlrev_b32 v{TT}, 4, v0")
        for n in range(4):
            A.vmem(f"buffer_load_dwordx4 v{TT}, s[12:15], s87 offen offset:{1024*n} lds", "u")
        A("G0_nou:")
    RS = 16; NM = 18; CA = 20; CB = 22; ONE = 24
    A(f"v_mov_b32 v{CA}, 0xc0135761\nv_mov_b32 v{CA+1}, 0xc0135761")
    A(f"v_mov_b32 v{CB}, 0xbdd2d3e8\nv_mov_b32 v{CB+1}, 0xbdd2d3e8")
    A(f"v_mov_b32 v{ONE}, 1.0\nv_mov_b32 v{ONE+1}, 1.0")
    A(f"v_mov_b32 v{RS}, v{STR}\nv_mov_b32 v{RS+1}, v{STR}\nv_mov_b32 v{NM}, v{STR+1}\nv_mov_b32 v{NM+1}, v{STR+1}")
    tick(A, 6)
    if opt.uload < 0: A.vmem(ufl, "ufl")
    Z = 26; E = 34; O = 42
    for m in range(3):
        A(f"s_lshl_b32 s75, s{78+m}, 12\ns_add_u32 s75, s75, s76")
        A(f"s_waitcnt lgkmcnt({min(15, 16-8*m)})" if m else "s_waitcnt lgkmcnt(15)")
        for half in range(2):
            q0 = 16*m + 8*half
            o = O + 4*half
            for p in range(4):
                A(f"v_pk_fma_f32 {vr(CSR+q0+2*p,2)}, {vr(CSR+q0+2*p,2)}, {vr(NM,2)}, {vr(B1R+q0+2*p,2)}")
            for p in range(4):
                A(f"v_pk_fma_f32 {vr(Z+2*p,2)}, {vr(ACC+q0+2*p,2)}, {vr(RS,2)}, {vr(CSR+q0+2*p,2)}")
            for p in range(4):
                A(f"v_pk_mul_f32 {vr(E+2*p,2)}, {vr(Z+2*p,2)}, {vr(Z+2*p,2)}")
            for p in range(4):
                A(f"v_pk_fma_f32 {vr(E+2*p,2)}, {vr(E+2*p,2)}, {vr(CB,2)}, {vr(CA,2)}")
            for p in range(4):
                A(f"v_pk_mul_f32 {vr(E+2*p,2)}, {vr(E+2*p,2)}, {vr(Z+2*p,2)}")
            for i in range(8):
                A(f"v_exp_f32 v{E+i}, v{E+i}")
            for p in range(4):
                A(f"v_pk_add_f32 {vr(E+2*p,2)}, {vr(E+2*p,2)}, {vr(ONE,2)}")
            for i in range(8):
                A(f"v_rcp_f32 v{E+i}, v{E+i}")
            for p in range(4):
                A(f"v_pk_mul_f32 {vr(E+2*p,2)}, {vr(E+2*p,2)}, {vr(Z+2*p,2)}")
            for p in range(4):
                A(f"v_cvt_pk_bf16_f32 v{o+p}, v{E+2*p}, v{E+2*p+1}")
            A.vmem(f"buffer_store_dwordx4 {vr(o,4)}, v3, s[12:15], s75 offen offset:{512*half} sc1", "h")
            if 2*m + half == opt.uload: A.vmem(ufl, "ufl")
            if 2*m + half == opt.ucheck: udma()
    tick(A, 7)
    A(f"v_mov_b32 v12, 0\nv_mov_b32 v13, s{NONCE}")
    A("s_cmp_ge_u32 s65, 20\ns_cbranch_scc1 G0_noconv")
    if opt.conv_prio: A("s_setprio 2")
    Zr = 52
    A(f"v_mov_b32 v{Zr}, 0\nv_mov_b32 v{Zr+1}, 0\nv_mov_b32 v{Zr+2}, 0\nv_mov_b32 v{Zr+3}, 0")
    A("v_min_u32 v5, 29, v0\nv_lshlrev_b32 v5, 4, v5\nv_add_u32 v5, s86, v5")
    A(f"ds_write_b128 v5, {vr(Zr,4)} offset:{URL+4096}")
    A("v_bfe_u32 v5, v0, 1, 2\nv_mul_u32_u24 v5, 4160, v5\nv_and_b32 v6, 1, v0\nv_lshl_add_u32 v5, v6, 4, v5\nv_add_u32 v5, s86, v5")
    A(f"ds_write_b128 v5, {vr(Zr,4)}")
    A("v_lshlrev_b32 v5, 4, v0\nv_add_u32 v5, s86, v5")
    A("v_and_b32 v9, 15, v0\nv_add_u32 v10, 1, v9\nv_and_b32 v11, 3, v10\nv_mul_u32_u24 v6, 4160, v11")
    A("v_and_b32 v10, 28, v10\nv_lshl_add_u32 v6, v10, 1, v6\nv_and_b32 v11, 48, v0\nv_add3_u32 v6, v6, v11, s86")
    A("v_add_u32 v7, 2048, v6")
    A(f"v_lshlrev_b32 v9, 5, v9\nv_sub_u32 v8, v11, v9\ns_add_u32 s87, s86, {URL+480}\nv_add_u32 v8, s87, v8")
    for n in range(4):
        w = KW + 6*n
        C1 = 64 + 12*n; C2 = C1 + 4; C3 = C1 + 8
        if n == 0:
            A(f"v_lshlrev_b32 v4, 16, v{VD}\nv_lshlrev_b32 v9, 16, v{w}\nv_add_f32 v4, v4, v9\nv_and_b32 v9, 0xffff0000, v{w}")
            A("v_cmp_eq_u32 vcc, 0, v0")
            A("v_cvt_pk_bf16_f32 v4, v4, v9")
            A("s_nop 0")
            A(f"v_cndmask_b32 v{w}, v{w}, v4, vcc")
        A(f"ds_write_b128 v5, {vr(w,4)} offset:{32+1024*n}")
        for i in range(4): A(f"v_alignbit_b32 v{C1+i}, v{w+i+1}, v{w+i}, 16")
        A(f"ds_write_b128 v5, {vr(C1,4)} offset:{4160+32+1024*n}")
        for i in range(4): A(f"v_mov_b32 v{C2+i}, v{w+i+1}")
        A(f"ds_write_b128 v5, {vr(C2,4)} offset:{2*4160+32+1024*n}")
        for i in range(4): A(f"v_alignbit_b32 v{C3+i}, v{w+i+2}, v{w+i+1}, 16")
        A(f"ds_write_b128 v5, {vr(C3,4)} offset:{3*4160+32+1024*n}")
        if n == 0:
            A(f"v_lshlrev_b32 v56, 16, v{w}\nv_mov_b32 v57, v{C1}")
            A("s_mov_b64 exec, 1")
            A(f"ds_write_b32 v5, v56 offset:{4160+28}")
            A(f"ds_write_b32 v5, v{w} offset:{2*4160+28}")
            A(f"ds_write_b64 v5, v[56:57] offset:{3*4160+24}")
            A("s_mov_b64 exec, -1")
    SETS = [128, 64]
    CACC = 192
    for i in range(32): A(f"v_mov_b32 v{CACC+i}, 0")
    def creads(st, r):
        b = SETS[st]
        for i in range(8):
            o = (64*(i & 3) + 8*r)
            A(f"ds_read2_b64 {vr(b+4*i,4)}, v{6+(i>>2)} offset0:{o} offset1:{o+1}")
            A(f"ds_read_b128 {vr(b+32+4*i,4)}, v8 offset:{3584-512*i+64*r}")
    order = mfma_order()
    def cmfma(st):
        b = SETS[st]
        for x, y in order:
            A(f"v_mfma_f32_16x16x32_bf16 {vr(CACC+4*(x+y),4)}, {vr(b+4*x,4)}, {vr(b+32+4*y,4)}, {vr(CACC+4*(x+y),4)}")
    A.wait_vm("u")
    creads(0, 0)
    tick(A, 8)
    A("s_waitcnt vmcnt(0)")
    A("buffer_store_dword v13, v12, s[12:15], s81 offen sc1")
    tick(A, 9)
    A("s_mov_b32 s88, 0")
    A("G0_cloop:")
    A("s_waitcnt lgkmcnt(0)")
    creads(1, 1)
    cmfma(0)
    A("v_add_u32 v6, 128, v6\nv_add_u32 v7, 128, v7\nv_add_u32 v8, 128, v8")
    A("s_waitcnt lgkmcnt(0)")
    A("s_add_u32 s88, s88, 1\ns_cmp_eq_u32 s88, 4\ns_cbranch_scc1 G0_cdone")
    creads(0, 0)
    cmfma(1)
    A("s_branch G0_cloop")
    A("G0_cdone:")
    cmfma(1)
    tick(A, 10)
    A("v_and_b32 v9, 15, v0\nv_lshlrev_b32 v9, 5, v9\nv_lshrrev_b32 v10, 4, v0\nv_lshl_add_u32 v9, v10, 3, v9")
    A(f"s_add_u32 s87, s84, {YT}")
    A("s_nop 7")
    for J in range(8):
        A(f"v_cvt_pk_bf16_f32 v{16+2*J}, v{CACC+4*J}, v{CACC+4*J+1}\nv_cvt_pk_bf16_f32 v{17+2*J}, v{CACC+4*J+2}, v{CACC+4*J+3}")
        A(f"buffer_store_dwordx2 {vr(16+2*J,2)}, v9, s[12:15], s87 offen offset:{512*J} sc1")
    A("s_mul_i32 s87, s65, 52\ns_lshr_b32 s87, s87, 8\ns_mul_i32 s88, s87, 5\ns_sub_u32 s88, s65, s88\ns_lshl2_add_u32 s88, s88, s3")
    A(f"s_lshl2_add_u32 s87, s64, s87\ns_mul_i32 s87, s87, {FS}\ns_lshl2_add_u32 s87, s88, s87\ns_add_u32 s87, s87, {FY}")
    A("s_waitcnt vmcnt(0)")
    A("buffer_store_dword v13, v12, s[12:15], s87 offen sc1")
    tick(A, 11)
    if opt.conv_prio: A("s_setprio 0")
    A("s_branch G0_ypoll")
    A("G0_noconv:")
    A("s_waitcnt vmcnt(0)")
    A("buffer_store_dword v13, v12, s[12:15], s81 offen sc1")
    tick(A, 9)
    A("s_cmp_lg_u32 s2, 255\ns_cbranch_scc1 G0_ypoll\ns_cmp_lg_u32 s3, 0\ns_cbranch_scc1 G0_ypoll")
    A(f"v_lshrrev_b32 v4, 1, v0\nv_mul_u32_u24 v4, {FS}, v4\nv_and_b32 v5, 1, v0\nv_lshl_add_u32 v4, v5, 6, v4\ns_mov_b32 s87, {FH}\ns_mov_b32 s97, 0")
    A("G0_eloop:")
    for i in range(4): A(f"buffer_load_dwordx4 {vr(16+4*i,4)}, v4, s[12:15], s87 offen offset:{16*i} sc1")
    A("s_add_u32 s97, s97, 1")
    A("s_waitcnt vmcnt(0)")
    for i in range(16): A(f"v_xor_b32 v{16+i}, s{NONCE}, v{16+i}")
    for i in range(1, 15, 2): A(f"v_or3_b32 v16, v16, v{16+i}, v{17+i}")
    A("v_or_b32 v16, v16, v31")
    A("v_cmp_ne_u32 vcc, 0, v16")
    A(f"s_cmp_ge_u32 s97, {LIMIT}\ns_cbranch_scc1 G0_edone")
    A("s_cbranch_vccnz G0_eloop")
    A("G0_edone:")
    A(f"buffer_store_dword v13, v12, s[12:15], 0 offen offset:{EOFF} sc1")
    A("G0_ypoll:")
    A(f"s_lshl2_add_u32 s87, s71, s3\ns_mul_i32 s88, s87, {FS}\ns_add_u32 s88, s88, {FY}")
    A("v_min_u32 v9, 19, v0\nv_lshlrev_b32 v9, 2, v9")
    A("v_lshrrev_b32 v10, 4, v0\ns_lshl_b32 s89, s3, 1\nv_add_u32 v10, s89, v10\nv_lshlrev_b32 v10, 1, v10\nv_xor_b32 v10, v10, v0\nv_and_b32 v10, 7, v10")
    A("v_lshrrev_b32 v11, 3, v0\nv_lshlrev_b32 v11, 12, v11\nv_lshl_add_u32 v10, v10, 4, v11")
    A(f"s_mul_i32 s87, s87, {20*4096}\ns_lshl_b32 s89, s70, 7\ns_add_u32 s87, s87, s89\ns_add_u32 s87, s87, {YT}")
    A(f"s_add_u32 s86, s87, {32768-1024}\ns_add_u32 s85, s87, {65536-2048}")
    A(f"s_mul_i32 s89, s3, 2560\ns_add_u32 m0, s89, {YL}")
    tick(A, 12)
    poll(A, "G0_yp", "buffer_load_dword v14, v9, s[12:15], s88 offen sc1", 14)
    tick(A, 13)
    tick_cnt(A, 97, 63)
    A("buffer_load_dwordx4 v10, s[12:15], s87 offen lds")
    A("buffer_load_dwordx4 v10, s[12:15], s86 offen offset:1024 lds")
    A("s_mov_b32 exec_hi, 0")
    A("buffer_load_dwordx4 v10, s[12:15], s85 offen offset:2048 lds")
    A("s_mov_b64 exec, -1")
    A("s_waitcnt vmcnt(0)")
    tick(A, 14)
    A("s_barrier")
    if opt.ticks:
        tick(A, 15)
        tick_store(A, 0, 250)
    A("s_endpgm")

def gen():
    A = Asm()
    A("s_load_dwordx16 s[32:47], s[0:1], 0\ns_load_dwordx16 s[48:63], s[0:1], 56")
    A("s_cmp_ge_u32 s2, 256\ns_cbranch_scc1 K_end")
    A("v_lshrrev_b32 v1, 6, v0\nv_and_b32 v0, 63, v0")
    A("s_and_b32 s64, s2, 7\ns_lshr_b32 s65, s2, 3")
    A("v_readfirstlane_b32 s3, v1")
    A("s_lshr_b32 s66, s65, 3\ns_and_b32 s67, s65, 7\ns_lshr_b32 s70, s64, 1\ns_lshl2_add_u32 s68, s70, s66")
    A("s_and_b32 s71, s64, 1\ns_lshl3_add_u32 s69, s71, s67")
    A("s_lshr_b32 s72, s65, 2\ns_lshl3_add_u32 s70, s70, s72\ns_and_b32 s72, s65, 3\ns_lshl2_add_u32 s71, s71, s72")
    tick_init(A); tick(A, 0)
    A("s_cmp_lt_u32 s3, 4\ns_cbranch_scc1 G0")
    A("s_sub_u32 s3, s3, 4")
    A("s_mul_i32 s80, s66, 3\ns_add_u32 s80, s80, s67\ns_cmp_ge_u32 s80, 10\ns_cselect_b32 s81, 10, 0\ns_sub_u32 s80, s80, s81")
    A("v_lshrrev_b32 v1, 3, v0\nv_lshrrev_b32 v2, 4, v0\nv_and_b32 v3, 7, v0\nv_xor_b32 v3, v3, v2")
    A("v_mul_u32_u24 v1, 1280, v1\nv_lshl_add_u32 v4, v3, 4, v1\nv_xor_b32 v5, 64, v4")
    A(f"v_add_u32 v6, {16*1280-2048}, v4\nv_add_u32 v7, {24*1280-3072}, v5\nv_add_u32 v5, {8*1280-1024}, v5")
    A("s_movk_i32 s94, 2880\nv_lshlrev_b32 v3, 4, v0")
    for i in range(3):
        A(f"v_add_u32 v1, {64*i}, v0\nv_mul_u32_u24 v1, 171, v1\nv_lshrrev_b32 v1, 11, v1\nv_mad_u32_u24 v{8+i}, v1, s94, v3")
    A("s_movk_i32 s94, 960")
    A("s_lshl_b32 s72, s3, 12")
    A(f"s_mul_i32 s73, s3, 3072\ns_add_u32 s73, s73, {WB}")
    A("s_lshl2_add_u32 s74, s68, s3\ns_mul_i32 s74, s74, 40960")
    A("s_mul_i32 s75, s3, 49152\ns_mul_i32 s76, s69, 192\ns_add_u32 s75, s75, s76")
    A("s_lshl_b32 s78, s80, 7\ns_mul_i32 s79, s80, 196608")
    A("s_waitcnt lgkmcnt(0)")
    A(f"s_load_dword s{NONCE}, s[62:63], {EOFF}")
    A.srd(4, 32, 2621440)
    A.srd(8, 48, 1966080)
    A.srd(12, 62, WS_SIZE)
    A("s_cmp_ge_u32 s65, 20\ns_cbranch_scc1 G1_W")
    g1_loader(A, True, "G1U")
    A("s_branch G1_G2")
    A("G1_W:")
    g1_loader(A, False, "G1W")
    A("G1_G2:")
    g1_gemm2(A)
    A("G0:")
    g0(A)
    A("K_end:")
    A("s_endpgm")
    return dict(name=KN + "_kernel", grid=256, block=512, lds=LDS_SIZE, body=A.text(), vgpr=256)

if __name__ == "__main__":
    import argparse
    ap = argparse.ArgumentParser()
    ap.add_argument("-o", default="f.s")
    ap.add_argument("--set", action="append", default=[])
    a = ap.parse_args()
    for s in a.set:
        k, v = s.split("="); setattr(opt, k, eval(v))
    open(a.o, "w").write(build_file([gen()]))
```

```python
import sys
from gen_common import *

EOFF = 0
UR = 4096
YT = UR + 2621440
WF = YT + 2621440
HF = WF + 1966080
ST = HF + 6291456
FS = 4352
FH = ST + 32768
FU = FH + 32*FS
FW = FU + 40*FS
FY = FW + 16*FS
WS_SIZE = 0x10000000
TICK1 = 32 << 20
LIMIT = 0x8000

XB = 0; WB = 65536; PREP = 114688
CV = 21216; URL = 16640
YL = 84992
PL = YL + 10240
CS = PL + 61440
LDS_SIZE = CS + 768

class Asm:
    def __init__(self):
        self.L = []; self.vm = []
    def __call__(self, s):
        for ln in s.strip("\n").split("\n"):
            ln = ln.strip()
            if ln: self.L.append(ln)
    def vmem(self, s, tag):
        self.L.append(s); self.vm.append(tag)
    def wait_vm(self, tag):
        if tag not in self.vm: return
        idx = max(i for i, t in enumerate(self.vm) if t == tag)
        n = len(self.vm) - 1 - idx
        assert n <= 63
        self.L.append(f"s_waitcnt vmcnt({n})")
        self.vm = self.vm[idx+1:]
    def srd(self, d, src, size):
        self(f"s_mov_b32 s{d}, s{src}\ns_mov_b32 s{d+1}, s{src+1}\ns_mov_b32 s{d+2}, {size}\ns_mov_b32 s{d+3}, 0x20000")
    def text(self): return "\n".join(self.L)

def vr(a, n): return f"v[{a}:{a+n-1}]" if n > 1 else f"v{a}"

class Opt:
    ticks = False
    wpos = 1
    wout = 2
    upos = 2
    ustage = 2
    conv_prio = True
    uload = -1
    ucheck = 3
    xend = False; noprep = False; nog0 = False; nok = False; lead = 2
    wpre = (2, 2, 1)
opt = Opt()

TICKV = 255
def tick_init(A):
    if not opt.ticks: return
    A(f"v_mov_b32 v{TICKV}, 0")
    A(f"s_memtime s[90:91]\ns_waitcnt lgkmcnt(0)\nv_writelane_b32 v{TICKV}, s90, 60")
def tick(A, slot):
    if not opt.ticks: return
    A("s_memrealtime s[90:91]")
    A("s_waitcnt lgkmcnt(0)")
    A(f"v_writelane_b32 v{TICKV}, s90, {slot}")
def tick_cnt(A, sreg, slot):
    if not opt.ticks: return
    A(f"v_writelane_b32 v{TICKV}, s{sreg}, {slot}")
def tick_store(A, wavereg_off, vt):
    if not opt.ticks: return
    A(f"s_memtime s[90:91]\ns_waitcnt lgkmcnt(0)\nv_writelane_b32 v{TICKV}, s90, 61")
    tick(A, 62)
    A(f"s_lshl_b32 s92, s2, 3\ns_add_u32 s92, s92, s3\ns_add_u32 s92, s92, {wavereg_off}\ns_lshl_b32 s92, s92, 8\ns_add_u32 s92, s92, {TICK1}")
    A(f"v_lshlrev_b32 v{vt}, 2, v0")
    A(f"buffer_store_dword v{TICKV}, v{vt}, s[12:15], s92 offen")

NONCE = 96
def poll(A, lab, load, vchk, pre=None):
    A("s_mov_b32 s97, 0")
    if pre is not None:
        A.wait_vm(pre)
        A(f"v_cmp_ne_u32 vcc, s{NONCE}, v{vchk}")
        A("s_nop 1")
        A(f"s_cbranch_vccz {lab}_done")
    A(f"{lab}_loop:")
    A(load)
    A("s_add_u32 s97, s97, 1")
    A("s_waitcnt vmcnt(0)")
    A(f"v_cmp_ne_u32 vcc, s{NONCE}, v{vchk}")
    A(f"s_cmp_ge_u32 s97, {LIMIT}\ns_cbranch_scc1 {lab}_done")
    A(f"s_cbranch_vccnz {lab}_loop")
    A(f"{lab}_done:")
    if pre is None: A.vm = []

def mfma_order():
    rem = [(x, y) for x in range(8) for y in range(8) if x + y < 8]
    out = []
    while rem:
        cnt = {}
        for x, y in rem: cnt[x+y] = cnt.get(x+y, 0) + 1
        recent = [a+b for a, b in out[-3:]]
        cand = [p for p in rem if p[0]+p[1] not in recent] or rem
        cand.sort(key=lambda p: (-cnt[p[0]+p[1]], max(p)))
        out.append(cand[0]); rem.remove(cand[0])
    return out

def g1_loader(A, prepU, lab):
    A.vm = []
    VX = 4; VW = 8; T = 12
    KR = 40; VR_ = 62; SK = 80; PP = 24; FR = 140
    VWF = 246
    def issue(s):
        buf = s % 4
        A(f"s_add_u32 m0, s72, {buf*16384}")
        A("s_add_u32 s76, s74, s78")
        for i in range(4):
            A.vmem(f"buffer_load_dwordx4 v{VX+i}, s[4:7], s76 offen offset:{1024*i} lds", f"st{s}")
        A(f"s_add_u32 m0, s73, {buf*12288}")
        A("s_add_u32 s77, s75, s79")
        for i in range(3):
            A.vmem(f"buffer_load_dwordx4 v{VW+i}, s[8:11], s77 offen offset:{1024*i} lds", f"st{s}")
        if s < 9:
            A("s_add_u32 s78, s78, 128\ns_add_u32 s79, s79, 196608\ns_cmp_eq_u32 s78, 1280\ns_cselect_b32 s78, 0, s78\ns_cselect_b32 s79, 0, s79")
    def prep_loads():
        if prepU:
            A.srd(16, 34, 2621440)
            A.srd(20, 36, 2621440)
            A.srd(28, 38, 5120)
            A("s_cmp_ge_u32 s65, 10\ns_cselect_b32 s81, 1, 0\ns_cselect_b32 s82, 10, 0")
            A("s_lshl1_add_u32 s81, s64, s81")
            A("s_sub_u32 s82, s65, s82")
            A("s_lshl_b32 s83, s81, 2\ns_add_u32 s83, s83, s3\ns_lshl_b32 s83, s83, 2")
            A(f"v_add_u32 v{T}, s83, v2")
            A(f"v_and_b32 v{T+1}, 15, v0")
            A(f"v_mul_u32_u24 v{T+2}, 10240, v{T}")
            A(f"v_lshl_add_u32 v{T+2}, v{T+1}, 3, v{T+2}")
            A("s_lshl_b32 s84, s82, 7")
            A(f"v_add_u32 v{T+2}, s84, v{T+2}")
            A(f"v_subrev_u32 v{T+3}, 3840, v{T+2}")
            A(f"v_cmp_eq_u32 vcc, 0, v{T}")
            A(f"v_mov_b32 v{T+4}, 0x80000000")
            A(f"v_lshlrev_b32 v{T+5}, 5, v{T+1}")
            A(f"v_cndmask_b32 v{T+3}, v{T+3}, v{T+4}, vcc")
            A("s_lshl_b32 s84, s82, 9")
            A("s_movk_i32 s85, 3840\ns_movk_i32 s86, 7680")
            A.vmem(f"buffer_load_dwordx4 {vr(SK,4)}, v{T+5}, s[28:31], s84 offen", "prep")
            A.vmem(f"buffer_load_dwordx4 {vr(SK+4,4)}, v{T+5}, s[28:31], s84 offen offset:16", "prep")
            for r in range(3):
                A.vmem(f"buffer_load_dwordx2 {vr(KR+2*r,2)}, v{T+3}, s[16:19], 0 offen offset:{1280*r}", "prep")
            for r in range(8):
                so = ["0", "s85", "s86"][r // 3]
                A.vmem(f"buffer_load_dwordx2 {vr(KR+6+2*r,2)}, v{T+2}, s[16:19], {so} offen offset:{1280*(r%3)}", "prep")
            for r in range(8):
                so = ["0", "s85", "s86"][r // 3]
                A.vmem(f"buffer_load_dwordx2 {vr(VR_+2*r,2)}, v{T+2}, s[20:23], {so} offen offset:{1280*(r%3)}", "prep")
            A(f"v_mul_u32_u24 v{PP}, 272, v{T+1}")
            A(f"v_lshlrev_b32 v{T}, 4, v2")
            A(f"v_sub_u32 v{PP}, v{PP}, v{T}")
            A(f"s_lshl_b32 s84, s3, 6\ns_sub_u32 s84, {PREP+240}, s84")
            A(f"v_add_u32 v{PP}, s84, v{PP}")
            A(f"v_mul_u32_u24 v{PP+1}, 272, v2")
            A(f"v_lshl_add_u32 v{PP+1}, v{T+1}, 4, v{PP+1}")
            A(f"s_mul_i32 s84, s3, {16*272}\ns_add_u32 s84, s84, {PREP}")
            A(f"v_add_u32 v{PP+1}, s84, v{PP+1}")
            A(f"v_lshlrev_b32 v{PP+2}, 14, v2")
            A(f"v_lshl_add_u32 v{PP+2}, v{T+1}, 4, v{PP+2}")
            A(f"s_lshl_b32 s84, s82, 6\ns_add_u32 s84, s84, s3\ns_lshl_b32 s84, s84, 12")
            A(f"s_lshl_b32 s85, s81, 8\ns_sub_u32 s85, {UR+3840}, s85\ns_add_u32 s87, s84, s85")
            A("s_mov_b32 s88, 0x05040100\ns_mov_b32 s89, 0x07060302")
            A(f"s_lshl2_add_u32 s84, s82, s3\ns_mul_i32 s84, s84, {FS}\ns_lshl2_add_u32 s84, s81, s84\ns_add_u32 s80, s84, {FU}")
        else:
            A.srd(16, 52, 1966080)
            A("s_mul_i32 s81, s64, 12\ns_add_u32 s81, s81, s65\ns_sub_u32 s81, s81, 20")
            A("s_mul_i32 s82, s81, 20480\ns_mul_i32 s83, s3, 320\ns_add_u32 s82, s82, s83")
            A(f"s_mul_i32 s83, s3, 5120\ns_add_u32 s83, s83, {PREP}")
            A(f"v_lshlrev_b32 v{T+1}, 4, v0")
            for n in range(5):
                A(f"v_add_u32 v{T}, {64*n}, v0")
                A(f"v_mul_u32_u24 v{T}, 205, v{T}")
                A(f"v_lshrrev_b32 v{T}, 12, v{T}")
                if n == 0: A("s_mov_b32 m0, s83")
                if n == 4: A(f"s_add_u32 m0, s83, 4096\ns_add_u32 s82, s82, 4096")
                A(f"v_mad_u32_u24 v{T}, v{T}, s94, v{T+1}")
                A.vmem(f"buffer_load_dwordx4 v{T}, s[16:19], s82 offen offset:{1024*(n%4)} lds", "prep")
            A(f"v_lshrrev_b32 v{T}, 5, v0")
            A(f"v_bfe_u32 v{T+1}, v0, 2, 2")
            A(f"v_lshl_add_u32 v{T+1}, v{T}, 2, v{T+1}")
            A(f"v_mul_u32_u24 v{PP}, 320, v{T+1}")
            A(f"v_and_b32 v{T+1}, 1, v2")
            A(f"v_mul_u32_u24 v{T+2}, 160, v{T+1}")
            A(f"v_and_b32 v{T+3}, 3, v0")
            A(f"v_mul_u32_u24 v{T+3}, 40, v{T+3}")
            A(f"v_add_u32 v{T+2}, v{T+3}, v{T+2}")
            A(f"v_add3_u32 v{PP}, v{PP}, v{T+2}, s83")
            A(f"v_mul_u32_u24 v{PP+1}, 245760, v{T+1}")
            A(f"v_lshl_add_u32 v{PP+1}, v{T}, 8, v{PP+1}")
            A(f"v_and_b32 v{T+3}, 15, v0")
            A(f"v_lshl_add_u32 v{PP+1}, v{T+3}, 4, v{PP+1}")
            A(f"s_mul_i32 s84, s3, 491520\ns_lshr_b32 s85, s81, 1\ns_mul_i32 s85, s85, 5120\ns_add_u32 s84, s84, s85")
            A(f"s_and_b32 s85, s81, 1\ns_lshl_b32 s85, s85, 9\ns_add_u32 s84, s84, s85\ns_add_u32 s87, s84, {WF}\ns_add_u32 s88, s87, 4096")
            A(f"s_lshr_b32 s84, s64, 1\ns_lshl2_add_u32 s84, s3, s84\ns_mul_i32 s84, s84, {FS}")
            A(f"s_and_b32 s85, s64, 1\ns_mul_i32 s85, s85, 12\ns_add_u32 s85, s85, s65\ns_lshl2_add_u32 s84, s85, s84\ns_add_u32 s80, s84, {FW-80}")
    def prepU_chan(e):
        d = e >> 1; hf = e & 1
        sel = "s89" if hf else "s88"
        P = FR; K = FR + 10; O = FR + 18
        for t in range(-2, 8):
            A(f"v_perm_b32 v{P+t+2}, v{KR+2*(t+2)+d}, v{KR+2*(t+3)+d}, {sel}")
        for t in range(8):
            A(f"v_dot2_f32_bf16 v{K+t}, v{P+t}, v{SK+2*e+1}, 0")
        for t in range(8):
            A(f"v_dot2c_f32_bf16 v{K+t}, v{P+t+2}, v{SK+2*e}")
        for t in range(8):
            if hf: A(f"v_and_b32 v{P+t}, 0xffff0000, v{VR_+2*t+d}")
            else: A(f"v_lshlrev_b32 v{P+t}, 16, v{VR_+2*t+d}")
        for t in range(8):
            A(f"v_mul_f32 v{K+t}, v{K+t}, v{P+t}")
        for i in range(4):
            A(f"v_cvt_pk_bf16_f32 v{O+i}, v{K+7-2*i}, v{K+6-2*i}")
        A(f"ds_write_b128 v{PP}, {vr(O,4)} offset:{e*16*272}")
    def prepU_out():
        for n in range(4):
            A(f"ds_read_b128 {vr(FR+4*n,4)}, v{PP+1} offset:{n*4*272}")
        for n in range(4):
            A(f"s_waitcnt lgkmcnt({3-n})")
            A.vmem(f"buffer_store_dwordx4 {vr(FR+4*n,4)}, v{PP+2}, s[12:15], s87 offen sc1", "pst")
            if n < 3: A("s_add_u32 s87, s87, 65536")
    def prepW_out():
        for n in range(5):
            for h in range(2):
                A(f"ds_read_b64_tr_b16 {vr(FR+4*n+2*h,2)}, v{PP} offset:{h*2560+8*n}")
        for n in range(5):
            A(f"s_waitcnt lgkmcnt({8-2*n})")
            A.vmem(f"buffer_store_dwordx4 {vr(FR+4*n,4)}, v{PP+1}, s[12:15], {'s88' if n == 4 else 's87'} offen offset:{1024*(n%4)} sc1", "pst")
    flagged = [False]
    def flag(force=False):
        if flagged[0] or not stored[0]: return
        if "pst" in A.vm:
            if not force: return
            A.wait_vm("pst")
        flagged[0] = True
        A(f"v_mov_b32 v{T}, 0\nv_mov_b32 v{T+1}, s{NONCE}")
        A.vmem(f"buffer_store_dword v{T+1}, v{T}, s[12:15], s80 offen sc1", "flag")
        tick(A, 31)
    stored = [False]
    pos = opt.upos if prepU else opt.wpos
    if opt.noprep: pos = 99
    tick(A, 1)
    for s in range(opt.lead):
        if pos == s: prep_loads()
        issue(s)
    if pos == 2 and opt.lead == 2: prep_loads()
    A("s_and_b32 s84, s65, 3\ns_mul_i32 s84, s84, 3\ns_lshr_b32 s85, s65, 2\ns_add_u32 s84, s84, s85\ns_cmp_ge_u32 s84, 12\ns_cselect_b32 s85, 12, 0\ns_sub_u32 s84, s84, s85")
    A(f"s_mul_i32 s98, s70, 196608\ns_mul_i32 s85, s3, {12*4096}\ns_add_u32 s98, s98, s85\ns_add_u32 s98, s98, {HF}")
    A(f"s_mul_i32 s99, s71, 245760\ns_mul_i32 s85, s3, {12*5120}\ns_add_u32 s99, s99, s85\ns_add_u32 s99, s99, {WF}")
    A("s_lshl_b32 s100, s84, 12\ns_mul_i32 s101, s84, 5120")
    A(f"s_lshr_b32 s93, s71, 1\ns_lshl2_add_u32 s93, s93, s3\ns_mul_i32 s93, s93, {FS}\ns_add_u32 s93, s93, {FW}")
    A(f"v_min_u32 v{VWF+1}, 23, v0\nv_lshlrev_b32 v{VWF+1}, 2, v{VWF+1}")
    A("v_lshlrev_b32 v1, 4, v0\nv_add_u32 v3, 4096, v1")
    A("s_waitcnt lgkmcnt(0)")
    A(f"s_add_u32 s{NONCE}, s{NONCE}, 0x9e3779b9")
    wfl = f"buffer_load_dword v{VWF}, v{VWF+1}, s[12:15], s93 offen sc1"
    tick(A, 2)
    nw = [0]
    def wissue(n):
        for _ in range(n):
            g2_wissue(A, nw[0]); nw[0] += 1
    for s in range(10):
        A.wait_vm(f"st{s}")
        tick(A, 10 + s)
        A("s_barrier")
        tick(A, 20 + s)
        if s == 6: A.vmem(wfl, "wfl")
        if s + opt.lead < 10: issue(s + opt.lead)
        if opt.noprep: continue
        if pos == s + 3: prep_loads()
        flag()
        if prepU:
            us = opt.ustage
            if s == us: A.wait_vm("prep")
            if us <= s < us + 4:
                A("s_nop 2")
                prepU_chan(s - us)
                if s == us + 3: A("s_waitcnt lgkmcnt(0)")
            if s == us + 4: prepU_out(); stored[0] = True
        else:
            if s == opt.wout:
                A.wait_vm("prep")
                prepW_out(); stored[0] = True
        if s == 8:
            poll(A, lab + "_wp", wfl, VWF, pre="wfl")
            tick_cnt(A, 97, 58)
            wissue(opt.wpre[0])
        if s == 9:
            flag(True)
            wissue(opt.wpre[1])
    tick(A, 30)
    A("s_barrier")
    if opt.xend:
        A("s_waitcnt vmcnt(0)")
        tick_store(A, 4, 250)
        A("s_endpgm")
        return
    assert flagged[0]
    wissue(opt.wpre[2])
    assert nw[0] == 5

WREG = 16; HREG = 116; GACC = 164
def g2_wissue(A, s):
    b = WREG + 20*(s % 5)
    A("s_add_u32 s81, s99, s101")
    for m in range(5):
        A.vmem(f"buffer_load_dwordx4 {vr(b+4*m,4)}, v{3 if m == 4 else 1}, s[12:15], s81 offen offset:{1024*(m%4)}", f"w{s}")
    if s < 11:
        A(f"s_add_u32 s101, s101, 5120\ns_cmp_eq_u32 s101, {12*5120}\ns_cselect_b32 s101, 0, s101")

def g1_gemm2(A):
    VH = 4
    T = 8
    A.srd(16, 54, 1280)
    A.srd(24, 58, 2621440)
    A(f"v_mul_u32_u24 v{T}, 40, v2")
    A("s_mul_i32 s82, s71, 160")
    A(f"buffer_load_dwordx4 {vr(HREG,4)}, v{T}, s[16:19], s82 offen")
    A(f"buffer_load_dwordx4 {vr(HREG+4,4)}, v{T}, s[16:19], s82 offen offset:16")
    A(f"buffer_load_dwordx2 {vr(HREG+8,2)}, v{T}, s[16:19], s82 offen offset:32")
    A(f"v_and_b32 v{T+2}, 15, v0\nv_mul_u32_u24 v{T+1}, 1280, v{T+2}\nv_add_u32 v{T+1}, v{T+1}, v{T}")
    A(f"s_lshl2_add_u32 s83, s70, s3\ns_mul_i32 s84, s83, {16*1280}\ns_add_u32 s82, s82, s84")
    A(f"v_lshlrev_b32 v{T+2}, 4, v{T+2}")
    A(f"s_lshl_b32 s83, s83, 8\ns_add_u32 s83, s83, {ST}")
    for j in range(4):
        A(f"s_xor_b32 s84, s3, {j}\ns_lshl_b32 s84, s84, 10\nv_add_u32 v{VH+j}, s84, v1")
    A(f"s_mul_i32 s84, s70, {FS}\ns_lshl_b32 s85, s3, 5\ns_add_u32 s84, s84, s85\ns_add_u32 s84, s84, {FH}")
    A(f"v_and_b32 v{T+3}, 7, v0\nv_lshlrev_b32 v{T+3}, 2, v{T+3}")
    A("s_waitcnt vmcnt(0)")
    for i in range(10):
        A(f"v_lshlrev_b32 v{GACC+2*i}, 16, v{HREG+i}\nv_and_b32 v{GACC+2*i+1}, 0xffff0000, v{HREG+i}")
    tick(A, 32)
    poll(A, "G1_hp", f"buffer_load_dword v{T+4}, v{T+3}, s[12:15], s84 offen sc1", T+4)
    tick(A, 33)
    tick_cnt(A, 97, 63)
    A.vm = []
    def hissue(s):
        b = HREG + 16*(s % 3)
        A("s_add_u32 s80, s98, s100")
        for j in range(4):
            A.vmem(f"buffer_load_dwordx4 {vr(b+4*j,4)}, v{VH+j}, s[12:15], s80 offen", f"h{s}")
        if s < 11:
            A(f"s_add_u32 s100, s100, 4096\ns_cmp_eq_u32 s100, {12*4096}\ns_cselect_b32 s100, 0, s100")
    for s in range(3): hissue(s)
    for j in range(1, 4):
        A(f"s_xor_b32 s84, s3, {j}\ns_mul_i32 s84, s84, 15360\ns_add_u32 s84, s84, {PL+(j-1)*5120}\nv_add_u32 v{10+j}, s84, v1")
    A(f"s_mul_i32 s84, s3, 15360\ns_add_u32 s84, s84, {PL}\nv_add_u32 v14, s84, v1")
    A(f"v_bfe_u32 v244, v0, 2, 2\nv_mad_u32_u24 v15, v2, 20, v244\nv_lshrrev_b32 v244, 1, v15\nv_xor_b32 v244, s3, v244\nv_and_b32 v244, 3, v244")
    A(f"v_lshlrev_b32 v15, 7, v15\nv_lshl_add_u32 v15, v244, 5, v15\nv_and_b32 v244, 3, v0\nv_lshl_add_u32 v15, v244, 3, v15\nv_add_u32 v15, {YL}, v15\nv_xor_b32 v244, 64, v15")
    QR = WREG + 40
    SR = QR + 12
    QG = WREG + 60
    OM = WREG + 56
    stl = f"buffer_load_dwordx4 {vr(SR,4)}, v{T+2}, s[12:15], s83 offen sc1"
    for s in range(12):
        wb = WREG + 20*(s % 5); hb = HREG + 16*(s % 3)
        if f"w{s}" in A.vm and A.vm.index(f"w{s}") > A.vm.index(f"h{s}"): A.wait_vm(f"w{s}")
        A.wait_vm(f"h{s}")
        tick(A, 34 + s)
        for j in range(4):
            for m in range(5):
                acc = vr(GACC+4*(5*j+m), 4)
                A(f"v_mfma_f32_16x16x32_bf16 {acc}, {vr(wb+4*m,4)}, {vr(hb+4*j,4)}, {acc if (s or j == 0) else 0}")
        if s + 3 < 12: hissue(s + 3)
        if s + 5 < 12: g2_wissue(A, s + 5)
        if s == 7:
            A.vmem(f"buffer_load_dwordx4 {vr(QR,4)}, v{T+1}, s[4:7], s82 offen", "q")
            A.vmem(f"buffer_load_dwordx4 {vr(QR+4,4)}, v{T+1}, s[4:7], s82 offen offset:16", "q")
            A.vmem(f"buffer_load_dwordx2 {vr(QR+8,2)}, v{T+1}, s[4:7], s82 offen offset:32", "q")
            A.vmem(stl, "q")
        if s == 10:
            poll(A, "G1_sp", stl, SR+3, pre="q")
            for i in range(10):
                A(f"v_lshlrev_b32 v{QG+2*i}, 16, v{QR+i}\nv_and_b32 v{QG+2*i+1}, 0xffff0000, v{QR+i}")
            A(f"v_sub_f32 v{OM}, 1.0, v{SR+2}\nv_sub_f32 v{OM+1}, 1.0, v{SR+2}\nv_mov_b32 v{SR+3}, v{SR+2}")
            for i in range(10):
                A(f"v_pk_mul_f32 {vr(QG+2*i,2)}, {vr(QG+2*i,2)}, {vr(SR+2,2)}")
    tick(A, 46)
    for j in range(1, 4):
        if j == 3: A("s_nop 7")
        for m in range(5):
            A(f"ds_write_b128 v{10+j}, {vr(GACC+4*(5*j+m),4)} offset:{1024*m}")
    A("s_waitcnt lgkmcnt(0)")
    tick(A, 47)
    A("s_barrier")
    tick(A, 48)
    PR = GACC + 20
    YR = HREG
    for m in range(5):
        A(f"ds_read_b64_tr_b16 {vr(YR+2*m,2)}, v{244 if m & 1 else 15} offset:{512*m}")
    for j in range(3):
        for m in range(5):
            A(f"ds_read_b128 {vr(PR+20*j+4*m,4)}, v14 offset:{5120*j+1024*m}")
    A("s_waitcnt lgkmcnt(15)")
    YU = HREG + 10
    for i in range(10):
        A(f"v_lshlrev_b32 v{YU+2*i}, 16, v{YR+i}\nv_and_b32 v{YU+2*i+1}, 0xffff0000, v{YR+i}")
    for i in range(10):
        A(f"v_pk_mul_f32 {vr(YU+2*i,2)}, {vr(YU+2*i,2)}, {vr(QG+2*i,2)}")
    for j in range(3):
        A(f"s_waitcnt lgkmcnt({10-5*j})")
        for i in range(10):
            A(f"v_pk_add_f32 {vr(GACC+2*i,2)}, {vr(GACC+2*i,2)}, {vr(PR+20*j+2*i,2)}")
    for i in range(10):
        A(f"v_pk_fma_f32 {vr(GACC+2*i,2)}, {vr(GACC+2*i,2)}, {vr(OM,2)}, {vr(YU+2*i,2)}")
    for i in range(10):
        A(f"v_cvt_pk_bf16_f32 v{YR+i}, v{GACC+2*i}, v{GACC+2*i+1}")
        if i == 3: A(f"buffer_store_dwordx4 {vr(YR,4)}, v{T+1}, s[24:27], s82 offen")
        if i == 7: A(f"buffer_store_dwordx4 {vr(YR+4,4)}, v{T+1}, s[24:27], s82 offen offset:16")
        if i == 9: A(f"buffer_store_dwordx2 {vr(YR+8,2)}, v{T+1}, s[24:27], s82 offen offset:32")
    if opt.ticks:
        tick(A, 49)
        A("s_waitcnt vmcnt(0)")
        tick(A, 50)
        tick_store(A, 4, 250)
    A("s_endpgm")

def g0(A):
    A.vm = []
    VA = 4
    VB = 8
    STR = 12
    SET = [16, 32, 48, 64]
    ACC = 80
    CSA = 128; ONES = 132
    CSR = 132; B1R = 180
    KW = 228; VD = 252; VUF = 253
    T = 136
    Q = 140; GWR = 150; B1V = 160
    A("v_and_b32 v1, 31, v0\nv_lshrrev_b32 v2, 5, v0")
    A(f"v_lshlrev_b32 v{T}, 4, v1\nv_lshlrev_b32 v{T+1}, 3, v1")
    A(f"v_mul_u32_u24 v{T+2}, 1280, v2\nv_add_u32 v{T+3}, v{T+2}, v{T+1}\nv_add_u32 v{T+2}, v{T+2}, v{T}")
    A("s_lshl4_add_u32 s72, s68, s69\ns_lshl2_add_u32 s72, s72, s3")
    A("s_mul_i32 s73, s72, 2560")
    A("s_cmp_eq_u32 s3, 3\ns_cselect_b32 s78, 0, s3")
    A("s_mul_i32 s74, s69, 192\ns_lshl_b32 s75, s78, 6\ns_add_u32 s74, s74, s75")
    A(f"v_lshlrev_b32 v{T+4 if False else 161}, 1, v1")
    A("s_waitcnt lgkmcnt(0)")
    A(f"s_load_dword s{NONCE}, s[62:63], {EOFF}")
    A.srd(4, 32, 2621440)
    A.srd(8, 56, 1280)
    A.vmem(f"buffer_load_dwordx4 {vr(Q,4)}, v{T+2}, s[4:7], s73 offen", "sq")
    A.vmem(f"buffer_load_dwordx4 {vr(Q+4,4)}, v{T+2}, s[4:7], s73 offen offset:512", "sq")
    A.vmem(f"buffer_load_dwordx2 {vr(Q+8,2)}, v{T+3}, s[4:7], s73 offen offset:1024", "sq")
    A.vmem(f"buffer_load_dwordx4 {vr(GWR,4)}, v{T}, s[8:11], 0 offen", "sq")
    A.vmem(f"buffer_load_dwordx4 {vr(GWR+4,4)}, v{T}, s[8:11], 0 offen offset:512", "sq")
    A.vmem(f"buffer_load_dwordx2 {vr(GWR+8,2)}, v{T+1}, s[8:11], 0 offen offset:1024", "sq")
    A.srd(16, 50, 3072)
    A.srd(12, 62, WS_SIZE)
    A.vmem(f"buffer_load_ushort v{B1V}, v161, s[16:19], s74 offen", "sq")
    tick(A, 1)
    A(f"v_bfe_u32 v{T+1}, v0, 2, 2\nv_lshl_add_u32 v{T+1}, v2, 3, v{T+1}")
    A(f"v_mul_u32_u24 v{VA}, 192, v{T+1}")
    A(f"v_bfe_u32 v{T+1}, v0, 4, 1\nv_lshl_add_u32 v{VA}, v{T+1}, 5, v{VA}")
    A(f"v_and_b32 v{T+2}, 3, v0\nv_lshl_add_u32 v{VA}, v{T+2}, 3, v{VA}")
    A("s_add_u32 s79, s78, 1\ns_cmp_eq_u32 s79, 3\ns_cselect_b32 s79, 0, s79")
    A("s_add_u32 s80, s79, 1\ns_cmp_eq_u32 s80, 3\ns_cselect_b32 s80, 0, s80")
    for i in (2, 1, 0):
        A(f"s_lshl_b32 s75, s{78+i}, 6\ns_add_u32 s75, s75, {WB}\nv_add_u32 v{VA+i}, s75, v{VA}")
    A(f"v_bfe_u32 v{T+2}, v0, 1, 3\nv_xor_b32 v{T+2}, v{T+2}, v2")
    A(f"v_lshlrev_b32 v{T+3}, 7, v1")
    A(f"v_lshl_add_u32 v{VB}, v{T+2}, 4, v{T+3}")
    A(f"s_lshl_b32 s75, s3, 12\nv_add_u32 v{VB}, s75, v{VB}")
    for j in range(1, 4): A(f"v_xor_b32 v{VB+j}, {32*j}, v{VB}")
    A(f"v_and_b32 v{T+2}, 15, v0\nv_cmp_eq_u32 vcc, v{T+2}, v{T+1}\nv_mov_b32 v{T+3}, 0x3f803f80")
    A(f"v_mov_b32 v{CSA}, 0\nv_mov_b32 v{CSA+1}, 0")
    for i in range(4): A(f"v_cndmask_b32 v{ONES+i}, 0, v{T+3}, vcc")
    A(f"v_mov_b32 v{CSA+2}, 0\nv_mov_b32 v{CSA+3}, 0")
    for i in range(48): A(f"v_mov_b32 v{ACC+i}, 0")
    A(f"v_lshlrev_b32 v3, 10, v{T+1}\nv_lshl_add_u32 v3, v2, 8, v3\nv_lshl_add_u32 v3, v{T+2}, 4, v3")
    A("s_lshr_b32 s76, s3, 1\ns_lshl1_add_u32 s81, s68, s76\ns_mul_i32 s76, s81, 196608")
    A("s_mul_i32 s77, s69, 12288\ns_add_u32 s76, s76, s77\ns_and_b32 s77, s3, 1\ns_lshl_b32 s82, s77, 11\ns_add_u32 s76, s76, s82")
    A(f"s_add_u32 s76, s76, {HF}")
    A(f"s_mul_i32 s81, s81, {FS}\ns_lshl1_add_u32 s77, s69, s77\ns_lshl2_add_u32 s81, s77, s81\ns_add_u32 s81, s81, {FH}")
    A("s_mov_b32 s73, 0\ns_mov_b32 s95, 0x3f803f80\ns_mov_b32 s98, -49152\ns_mov_b32 s99, -36864")
    A("v_mov_b32 v162, 0\nv_mov_b32 v163, 0\nv_mov_b32 v164, 0")
    def rd(j, k):
        b = SET[j]
        if k == 0: return f"ds_read_b128 {vr(b,4)}, v{VB+j}"
        m = (k-1) >> 1; h = (k-1) & 1
        return f"ds_read_b64_tr_b16 {vr(b+4+4*m+2*h,2)}, v{VA+m} offset:{(16*j+4*h)*192}"
    A("s_waitcnt lgkmcnt(0)")
    A(f"s_add_u32 s{NONCE}, s{NONCE}, 0x9e3779b9")
    tick(A, 2)
    A("s_barrier")
    tick(A, 20)
    for j in range(2):
        for k in range(7): A(rd(j, k))
    A.wait_vm("sq")
    SX = 162; SQ = 163; SG = 164
    for i in range(10):
        A(f"v_dot2c_f32_bf16 v{SX}, s95, v{Q+i}\nv_dot2c_f32_bf16 v{SQ}, v{Q+i}, v{Q+i}\nv_dot2c_f32_bf16 v{SG}, v{Q+i}, v{GWR+i}")
    A(f"v_lshlrev_b32 v{B1V}, 16, v{B1V}")
    A(f"s_lshl_b32 s75, s78, 7\ns_add_u32 s75, s75, {CS}")
    A(f"v_lshlrev_b32 v{T}, 2, v1\nv_add_u32 v{T}, s75, v{T}")
    A(f"ds_write_b32 v{T}, v{B1V} offset:384")
    for dpp in ("quad_perm:[1,0,3,2] row_mask:0xf bank_mask:0xf", "quad_perm:[2,3,0,1] row_mask:0xf bank_mask:0xf",
                "row_half_mirror row_mask:0xf bank_mask:0xf", "row_mirror row_mask:0xf bank_mask:0xf",
                "row_bcast:15 row_mask:0xa bank_mask:0xf"):
        for r in (SX, SQ, SG):
            A(f"v_add_f32_dpp v{r}, v{r}, v{r} {dpp}")
    R = 168
    A(f"v_mul_f32 v{SX}, 0x3acccccd, v{SX}\nv_mul_f32 v{SQ}, 0x3acccccd, v{SQ}\nv_mul_f32 v{SG}, 0xbfb8aa3b, v{SG}")
    A(f"v_fma_f32 v{SQ}, -v{SX}, v{SX}, v{SQ}")
    A(f"v_exp_f32 v{SG}, v{SG}")
    A(f"v_max_f32 v{SQ}, 0, v{SQ}")
    A(f"v_add_f32 v{SQ}, 0x3727c5ac, v{SQ}")
    A(f"v_add_f32 v{SG}, 1.0, v{SG}")
    A(f"v_rsq_f32 v{R}, v{SQ}")
    A(f"v_rcp_f32 v{R+2}, v{SG}")
    A(f"v_mov_b32 v{R+3}, s{NONCE}")
    A(f"v_mul_f32 v{R+1}, -1.0, v{SX}" if False else f"v_sub_f32 v{SX}, 0, v{SX}")
    A(f"v_mul_f32 v{R+1}, v{SX}, v{R}")
    A(f"v_lshlrev_b32 v{T+1}, 4, v2")
    A(f"s_lshl_b32 s72, s72, 5\ns_add_u32 s72, s72, {ST}")
    A("s_mov_b32 exec_lo, 0x80000000\ns_mov_b32 exec_hi, 0x80000000")
    A.vmem(f"buffer_store_dwordx4 {vr(R,4)}, v{T+1}, s[12:15], s72 offen sc1", "rec")
    A("s_mov_b64 exec, -1")
    A(f"v_lshlrev_b32 v7, 6, v0\nv_and_b32 v7, 64, v7\nv_and_b32 v{T+1}, 48, v0\nv_add3_u32 v7, v7, v{T+1}, s75")
    A("s_cmp_ge_u32 s65, 20\ns_cbranch_scc1 G0_nok")
    if opt.nok: A("s_branch G0_nok")
    A("s_mul_i32 s83, s64, 20\ns_add_u32 s83, s83, s65\ns_lshl2_add_u32 s83, s83, s3")
    A("s_lshl_b32 s84, s83, 12")
    A("s_add_u32 s20, s40, s84\ns_addc_u32 s21, s41, 0\ns_movk_i32 s22, 4096\ns_mov_b32 s23, 0x20000")
    A.srd(24, 42, 1280)
    A(f"v_lshlrev_b32 v{T}, 4, v0\ns_lshl_b32 s85, s83, 1\nv_mov_b32 v{T+1}, 0")
    for n in range(4):
        A(f"buffer_load_dwordx4 {vr(KW+6*n,4)}, v{T}, s[20:23], 0 offen offset:{1024*n}")
        A(f"buffer_load_dwordx2 {vr(KW+6*n+4,2)}, v{T}, s[20:23], 0 offen offset:{1024*n+16}")
    A(f"buffer_load_ushort v{VD}, v{T+1}, s[24:27], s85 offen")
    A("G0_nok:")
    tick(A, 3)
    if opt.ticks: pass
    first = [True]
    def stage(last):
        for j in range(4):
            b = SET[j]
            doread = not (last and j >= 2)
            if j == 2 and not last:
                A("s_add_u32 s73, s73, 1\ns_and_b32 s74, s73, 3\ns_cselect_b32 s74, 16384, s98\ns_cselect_b32 s75, 12288, s99")
                for i in range(3): A(f"v_add_u32 v{VA+i}, s75, v{VA+i}")
                for i in range(4): A(f"v_add_u32 v{VB+i}, s74, v{VB+i}")
                if opt.lead == 3: A("s_waitcnt lgkmcnt(0)")
                A("s_barrier")
            if opt.nog0: continue
            A(f"s_waitcnt lgkmcnt({0 if (last and j == 3) else 7})")
            jn = (j + 2) & 3
            rds = [rd(jn, k) for k in range(7)] if doread else []
            cs = f"v_mfma_f32_16x16x32_bf16 {vr(CSA,4)}, {vr(b+4,4)}, {vr(ONES,4)}, {vr(CSA,4)}"
            if last and j == 3: A(cs)
            for m in range(3):
                A(f"v_mfma_f32_32x32x16_bf16 {vr(ACC+16*m,16)}, {vr(b+4+4*m,4)}, {vr(b,4)}, {vr(ACC+16*m,16)}")
                for r in rds[[0, 3, 5][m]:[3, 5, 7][m]]: A(r)
                if last and j == 0 and m == 0:
                    A(f"v_lshlrev_b32 v{T}, 4, v1")
                    A(f"s_lshl2_add_u32 s72, s68, s3\ns_lshl_b32 s72, s72, 9\ns_add_u32 s72, s72, {ST}")
                    A(f"buffer_load_dwordx4 {vr(STR,4)}, v{T}, s[12:15], s72 offen sc1")
                if last and j == 3 and m == 2:
                    A("s_mov_b32 exec_lo, 0x00030003\ns_mov_b32 exec_hi, 0x00030003")
                    A(f"ds_write_b128 v7, {vr(CSA,4)}")
                    A("s_mov_b64 exec, -1")
            if not (last and j == 3): A(cs)
    A("s_waitcnt lgkmcnt(0)")
    A("G0_loop:")
    stage(False)
    A("s_cmp_lt_u32 s73, 9\ns_cbranch_scc1 G0_loop")
    stage(True)
    A(f"v_lshlrev_b32 v7, 4, v2\nv_add_u32 v7, {CS}, v7")
    for i in range(3):
        A(f"s_lshl_b32 s75, s{78+i}, 7\nv_add_u32 v{VA+i}, s75, v7")
    A("s_waitcnt lgkmcnt(0)")
    tick(A, 4)
    A("s_barrier")
    tick(A, 5)
    if opt.xend:
        A("s_waitcnt vmcnt(0)")
        tick_store(A, 0, 250)
        A("s_endpgm")
        return
    for m in range(3):
        for qq in range(4):
            A(f"ds_read_b128 {vr(CSR+16*m+4*qq,4)}, v{VA+m} offset:{32*qq}")
            A(f"ds_read_b128 {vr(B1R+16*m+4*qq,4)}, v{VA+m} offset:{384+32*qq}")
    TT = 50
    A(f"v_lshlrev_b32 v{TT}, 4, v1")
    A.vm = ["x"]
    poll(A, "G0_sp", f"buffer_load_dwordx4 {vr(STR,4)}, v{TT}, s[12:15], s72 offen sc1", STR+3, pre="x")
    A("s_min_u32 s85, s65, 19\ns_mul_i32 s86, s64, 20\ns_add_u32 s85, s85, s86\ns_lshr_b32 s85, s85, 4\ns_lshl2_add_u32 s85, s85, s3")
    A(f"s_mul_i32 s85, s85, {FS}\ns_add_u32 s85, s85, {FU}")
    A(f"v_and_b32 v{TT+1}, 15, v0\nv_lshlrev_b32 v{TT+1}, 2, v{TT+1}")
    ufl = f"buffer_load_dword v{VUF}, v{TT+1}, s[12:15], s85 offen sc1"
    A.vm = []
    def udma():
        A("s_cmp_ge_u32 s65, 20\ns_cbranch_scc1 G0_nou")
        poll(A, "G0_up", ufl, VUF, pre="ufl")
        tick_cnt(A, 97, 58)
        A(f"s_mul_i32 s86, s3, {CV}")
        A(f"s_add_u32 m0, s86, {URL}")
        A(f"s_add_u32 s87, s84, {UR}")
        A(f"v_lshlrev_b32 v{TT}, 4, v0")
        for n in range(4):
            A.vmem(f"buffer_load_dwordx4 v{TT}, s[12:15], s87 offen offset:{1024*n} lds", "u")
        A("G0_nou:")
    RS = 16; NM = 18; CA = 20; CB = 22; ONE = 24
    A(f"v_mov_b32 v{CA}, 0xc0135761\nv_mov_b32 v{CA+1}, 0xc0135761")
    A(f"v_mov_b32 v{CB}, 0xbdd2d3e8\nv_mov_b32 v{CB+1}, 0xbdd2d3e8")
    A(f"v_mov_b32 v{ONE}, 1.0\nv_mov_b32 v{ONE+1}, 1.0")
    A(f"v_mov_b32 v{RS}, v{STR}\nv_mov_b32 v{RS+1}, v{STR}\nv_mov_b32 v{NM}, v{STR+1}\nv_mov_b32 v{NM+1}, v{STR+1}")
    tick(A, 6)
    if opt.uload < 0: A.vmem(ufl, "ufl")
    Z = 26; E = 34; O = 42
    for m in range(3):
        A(f"s_lshl_b32 s75, s{78+m}, 12\ns_add_u32 s75, s75, s76")
        A(f"s_waitcnt lgkmcnt({min(15, 16-8*m)})" if m else "s_waitcnt lgkmcnt(15)")
        for half in range(2):
            q0 = 16*m + 8*half
            o = O + 4*half
            for p in range(4):
                A(f"v_pk_fma_f32 {vr(CSR+q0+2*p,2)}, {vr(CSR+q0+2*p,2)}, {vr(NM,2)}, {vr(B1R+q0+2*p,2)}")
            for p in range(4):
                A(f"v_pk_fma_f32 {vr(Z+2*p,2)}, {vr(ACC+q0+2*p,2)}, {vr(RS,2)}, {vr(CSR+q0+2*p,2)}")
            for p in range(4):
                A(f"v_pk_mul_f32 {vr(E+2*p,2)}, {vr(Z+2*p,2)}, {vr(Z+2*p,2)}")
            for p in range(4):
                A(f"v_pk_fma_f32 {vr(E+2*p,2)}, {vr(E+2*p,2)}, {vr(CB,2)}, {vr(CA,2)}")
            for p in range(4):
                A(f"v_pk_mul_f32 {vr(E+2*p,2)}, {vr(E+2*p,2)}, {vr(Z+2*p,2)}")
            for i in range(8):
                A(f"v_exp_f32 v{E+i}, v{E+i}")
            for p in range(4):
                A(f"v_pk_add_f32 {vr(E+2*p,2)}, {vr(E+2*p,2)}, {vr(ONE,2)}")
            for i in range(8):
                A(f"v_rcp_f32 v{E+i}, v{E+i}")
            for p in range(4):
                A(f"v_pk_mul_f32 {vr(E+2*p,2)}, {vr(E+2*p,2)}, {vr(Z+2*p,2)}")
            for p in range(4):
                A(f"v_cvt_pk_bf16_f32 v{o+p}, v{E+2*p}, v{E+2*p+1}")
            A.vmem(f"buffer_store_dwordx4 {vr(o,4)}, v3, s[12:15], s75 offen offset:{512*half} sc1", "h")
            if 2*m + half == opt.uload: A.vmem(ufl, "ufl")
            if 2*m + half == opt.ucheck: udma()
    tick(A, 7)
    A(f"v_mov_b32 v12, 0\nv_mov_b32 v13, s{NONCE}")
    A("s_cmp_ge_u32 s65, 20\ns_cbranch_scc1 G0_noconv")
    if opt.conv_prio: A("s_setprio 2")
    Zr = 52
    A(f"v_mov_b32 v{Zr}, 0\nv_mov_b32 v{Zr+1}, 0\nv_mov_b32 v{Zr+2}, 0\nv_mov_b32 v{Zr+3}, 0")
    A("v_min_u32 v5, 29, v0\nv_lshlrev_b32 v5, 4, v5\nv_add_u32 v5, s86, v5")
    A(f"ds_write_b128 v5, {vr(Zr,4)} offset:{URL+4096}")
    A("v_bfe_u32 v5, v0, 1, 2\nv_mul_u32_u24 v5, 4160, v5\nv_and_b32 v6, 1, v0\nv_lshl_add_u32 v5, v6, 4, v5\nv_add_u32 v5, s86, v5")
    A(f"ds_write_b128 v5, {vr(Zr,4)}")
    A("v_lshlrev_b32 v5, 4, v0\nv_add_u32 v5, s86, v5")
    A("v_and_b32 v9, 15, v0\nv_add_u32 v10, 1, v9\nv_and_b32 v11, 3, v10\nv_mul_u32_u24 v6, 4160, v11")
    A("v_and_b32 v10, 28, v10\nv_lshl_add_u32 v6, v10, 1, v6\nv_and_b32 v11, 48, v0\nv_add3_u32 v6, v6, v11, s86")
    A("v_add_u32 v7, 2048, v6")
    A(f"v_lshlrev_b32 v9, 5, v9\nv_sub_u32 v8, v11, v9\ns_add_u32 s87, s86, {URL+480}\nv_add_u32 v8, s87, v8")
    for n in range(4):
        w = KW + 6*n
        C1 = 64 + 12*n; C2 = C1 + 4; C3 = C1 + 8
        if n == 0:
            A(f"v_lshlrev_b32 v4, 16, v{VD}\nv_lshlrev_b32 v9, 16, v{w}\nv_add_f32 v4, v4, v9\nv_and_b32 v9, 0xffff0000, v{w}")
            A("v_cmp_eq_u32 vcc, 0, v0")
            A("v_cvt_pk_bf16_f32 v4, v4, v9")
            A("s_nop 0")
            A(f"v_cndmask_b32 v{w}, v{w}, v4, vcc")
        A(f"ds_write_b128 v5, {vr(w,4)} offset:{32+1024*n}")
        for i in range(4): A(f"v_alignbit_b32 v{C1+i}, v{w+i+1}, v{w+i}, 16")
        A(f"ds_write_b128 v5, {vr(C1,4)} offset:{4160+32+1024*n}")
        for i in range(4): A(f"v_mov_b32 v{C2+i}, v{w+i+1}")
        A(f"ds_write_b128 v5, {vr(C2,4)} offset:{2*4160+32+1024*n}")
        for i in range(4): A(f"v_alignbit_b32 v{C3+i}, v{w+i+2}, v{w+i+1}, 16")
        A(f"ds_write_b128 v5, {vr(C3,4)} offset:{3*4160+32+1024*n}")
        if n == 0:
            A(f"v_lshlrev_b32 v56, 16, v{w}\nv_mov_b32 v57, v{C1}")
            A("s_mov_b64 exec, 1")
            A(f"ds_write_b32 v5, v56 offset:{4160+28}")
            A(f"ds_write_b32 v5, v{w} offset:{2*4160+28}")
            A(f"ds_write_b64 v5, v[56:57] offset:{3*4160+24}")
            A("s_mov_b64 exec, -1")
    SETS = [128, 64]
    CACC = 192
    for i in range(32): A(f"v_mov_b32 v{CACC+i}, 0")
    def creads(st, r):
        b = SETS[st]
        for i in range(8):
            o = (64*(i & 3) + 8*r)
            A(f"ds_read2_b64 {vr(b+4*i,4)}, v{6+(i>>2)} offset0:{o} offset1:{o+1}")
            A(f"ds_read_b128 {vr(b+32+4*i,4)}, v8 offset:{3584-512*i+64*r}")
    order = mfma_order()
    def cmfma(st):
        b = SETS[st]
        for x, y in order:
            A(f"v_mfma_f32_16x16x32_bf16 {vr(CACC+4*(x+y),4)}, {vr(b+4*x,4)}, {vr(b+32+4*y,4)}, {vr(CACC+4*(x+y),4)}")
    A.wait_vm("u")
    creads(0, 0)
    tick(A, 8)
    A("s_waitcnt vmcnt(0)")
    A("buffer_store_dword v13, v12, s[12:15], s81 offen sc1")
    tick(A, 9)
    A("s_mov_b32 s88, 0")
    A("G0_cloop:")
    A("s_waitcnt lgkmcnt(0)")
    creads(1, 1)
    cmfma(0)
    A("v_add_u32 v6, 128, v6\nv_add_u32 v7, 128, v7\nv_add_u32 v8, 128, v8")
    A("s_waitcnt lgkmcnt(0)")
    A("s_add_u32 s88, s88, 1\ns_cmp_eq_u32 s88, 4\ns_cbranch_scc1 G0_cdone")
    creads(0, 0)
    cmfma(1)
    A("s_branch G0_cloop")
    A("G0_cdone:")
    cmfma(1)
    tick(A, 10)
    A("v_and_b32 v9, 15, v0\nv_lshlrev_b32 v9, 5, v9\nv_lshrrev_b32 v10, 4, v0\nv_lshl_add_u32 v9, v10, 3, v9")
    A(f"s_add_u32 s87, s84, {YT}")
    A("s_nop 7")
    for J in range(8):
        A(f"v_cvt_pk_bf16_f32 v{16+2*J}, v{CACC+4*J}, v{CACC+4*J+1}\nv_cvt_pk_bf16_f32 v{17+2*J}, v{CACC+4*J+2}, v{CACC+4*J+3}")
        A(f"buffer_store_dwordx2 {vr(16+2*J,2)}, v9, s[12:15], s87 offen offset:{512*J} sc1")
    A("s_mul_i32 s87, s65, 52\ns_lshr_b32 s87, s87, 8\ns_mul_i32 s88, s87, 5\ns_sub_u32 s88, s65, s88\ns_lshl2_add_u32 s88, s88, s3")
    A(f"s_lshl2_add_u32 s87, s64, s87\ns_mul_i32 s87, s87, {FS}\ns_lshl2_add_u32 s87, s88, s87\ns_add_u32 s87, s87, {FY}")
    A("s_waitcnt vmcnt(0)")
    A("buffer_store_dword v13, v12, s[12:15], s87 offen sc1")
    tick(A, 11)
    if opt.conv_prio: A("s_setprio 0")
    A("s_branch G0_ypoll")
    A("G0_noconv:")
    A("s_waitcnt vmcnt(0)")
    A("buffer_store_dword v13, v12, s[12:15], s81 offen sc1")
    tick(A, 9)
    A("s_cmp_lg_u32 s2, 255\ns_cbranch_scc1 G0_ypoll\ns_cmp_lg_u32 s3, 0\ns_cbranch_scc1 G0_ypoll")
    A(f"v_lshrrev_b32 v4, 1, v0\nv_mul_u32_u24 v4, {FS}, v4\nv_and_b32 v5, 1, v0\nv_lshl_add_u32 v4, v5, 6, v4\ns_mov_b32 s87, {FH}\ns_mov_b32 s97, 0")
    A("G0_eloop:")
    for i in range(4): A(f"buffer_load_dwordx4 {vr(16+4*i,4)}, v4, s[12:15], s87 offen offset:{16*i} sc1")
    A("s_add_u32 s97, s97, 1")
    A("s_waitcnt vmcnt(0)")
    for i in range(16): A(f"v_xor_b32 v{16+i}, s{NONCE}, v{16+i}")
    for i in range(1, 15, 2): A(f"v_or3_b32 v16, v16, v{16+i}, v{17+i}")
    A("v_or_b32 v16, v16, v31")
    A("v_cmp_ne_u32 vcc, 0, v16")
    A(f"s_cmp_ge_u32 s97, {LIMIT}\ns_cbranch_scc1 G0_edone")
    A("s_cbranch_vccnz G0_eloop")
    A("G0_edone:")
    A(f"buffer_store_dword v13, v12, s[12:15], 0 offen offset:{EOFF} sc1")
    A("G0_ypoll:")
    A(f"s_lshl2_add_u32 s87, s71, s3\ns_mul_i32 s88, s87, {FS}\ns_add_u32 s88, s88, {FY}")
    A("v_min_u32 v9, 19, v0\nv_lshlrev_b32 v9, 2, v9")
    A("v_lshrrev_b32 v10, 4, v0\ns_lshl_b32 s89, s3, 1\nv_add_u32 v10, s89, v10\nv_lshlrev_b32 v10, 1, v10\nv_xor_b32 v10, v10, v0\nv_and_b32 v10, 7, v10")
    A("v_lshrrev_b32 v11, 3, v0\nv_lshlrev_b32 v11, 12, v11\nv_lshl_add_u32 v10, v10, 4, v11")
    A(f"s_mul_i32 s87, s87, {20*4096}\ns_lshl_b32 s89, s70, 7\ns_add_u32 s87, s87, s89\ns_add_u32 s87, s87, {YT}")
    A(f"s_add_u32 s86, s87, {32768-1024}\ns_add_u32 s85, s87, {65536-2048}")
    A(f"s_mul_i32 s89, s3, 2560\ns_add_u32 m0, s89, {YL}")
    tick(A, 12)
    poll(A, "G0_yp", "buffer_load_dword v14, v9, s[12:15], s88 offen sc1", 14)
    tick(A, 13)
    tick_cnt(A, 97, 63)
    A("buffer_load_dwordx4 v10, s[12:15], s87 offen lds")
    A("buffer_load_dwordx4 v10, s[12:15], s86 offen offset:1024 lds")
    A("s_mov_b32 exec_hi, 0")
    A("buffer_load_dwordx4 v10, s[12:15], s85 offen offset:2048 lds")
    A("s_mov_b64 exec, -1")
    A("s_waitcnt vmcnt(0)")
    tick(A, 14)
    A("s_barrier")
    if opt.ticks:
        tick(A, 15)
        tick_store(A, 0, 250)
    A("s_endpgm")

def gen():
    A = Asm()
    A("s_load_dwordx16 s[32:47], s[0:1], 0\ns_load_dwordx16 s[48:63], s[0:1], 56")
    A("s_cmp_ge_u32 s2, 256\ns_cbranch_scc1 K_end")
    A("v_lshrrev_b32 v1, 6, v0\nv_and_b32 v0, 63, v0")
    A("s_and_b32 s64, s2, 7\ns_lshr_b32 s65, s2, 3")
    A("v_readfirstlane_b32 s3, v1")
    A("s_lshr_b32 s66, s65, 3\ns_and_b32 s67, s65, 7\ns_lshr_b32 s70, s64, 1\ns_lshl2_add_u32 s68, s70, s66")
    A("s_and_b32 s71, s64, 1\ns_lshl3_add_u32 s69, s71, s67")
    A("s_lshr_b32 s72, s65, 2\ns_lshl3_add_u32 s70, s70, s72\ns_and_b32 s72, s65, 3\ns_lshl2_add_u32 s71, s71, s72")
    tick_init(A); tick(A, 0)
    A("s_cmp_lt_u32 s3, 4\ns_cbranch_scc1 G0")
    A("s_sub_u32 s3, s3, 4")
    A("s_mul_i32 s80, s66, 3\ns_add_u32 s80, s80, s67\ns_cmp_ge_u32 s80, 10\ns_cselect_b32 s81, 10, 0\ns_sub_u32 s80, s80, s81")
    A("v_lshrrev_b32 v1, 3, v0\nv_lshrrev_b32 v2, 4, v0\nv_and_b32 v3, 7, v0\nv_xor_b32 v3, v3, v2")
    A("v_mul_u32_u24 v1, 1280, v1\nv_lshl_add_u32 v4, v3, 4, v1\nv_xor_b32 v5, 64, v4")
    A(f"v_add_u32 v6, {16*1280-2048}, v4\nv_add_u32 v7, {24*1280-3072}, v5\nv_add_u32 v5, {8*1280-1024}, v5")
    A("s_movk_i32 s94, 2880\nv_lshlrev_b32 v3, 4, v0")
    for i in range(3):
        A(f"v_add_u32 v1, {64*i}, v0\nv_mul_u32_u24 v1, 171, v1\nv_lshrrev_b32 v1, 11, v1\nv_mad_u32_u24 v{8+i}, v1, s94, v3")
    A("s_movk_i32 s94, 960")
    A("s_lshl_b32 s72, s3, 12")
    A(f"s_mul_i32 s73, s3, 3072\ns_add_u32 s73, s73, {WB}")
    A("s_lshl2_add_u32 s74, s68, s3\ns_mul_i32 s74, s74, 40960")
    A("s_mul_i32 s75, s3, 49152\ns_mul_i32 s76, s69, 192\ns_add_u32 s75, s75, s76")
    A("s_lshl_b32 s78, s80, 7\ns_mul_i32 s79, s80, 196608")
    A("s_waitcnt lgkmcnt(0)")
    A(f"s_load_dword s{NONCE}, s[62:63], {EOFF}")
    A.srd(4, 32, 2621440)
    A.srd(8, 48, 1966080)
    A.srd(12, 62, WS_SIZE)
    A("s_cmp_ge_u32 s65, 20\ns_cbranch_scc1 G1_W")
    g1_loader(A, True, "G1U")
    A("s_branch G1_G2")
    A("G1_W:")
    g1_loader(A, False, "G1W")
    A("G1_G2:")
    g1_gemm2(A)
    A("G0:")
    g0(A)
    A("K_end:")
    A("s_endpgm")
    return dict(name=KN + "_kernel", grid=256, block=512, lds=LDS_SIZE, body=A.text(), vgpr=256)

if __name__ == "__main__":
    import argparse
    ap = argparse.ArgumentParser()
    ap.add_argument("-o", default="f.s")
    ap.add_argument("--set", action="append", default=[])
    a = ap.parse_args()
    for s in a.set:
        k, v = s.split("="); setattr(opt, k, eval(v))
    open(a.o, "w").write(build_file([gen()]))
```

```python
import sys
from gen_common import *

EOFF = 0
UR = 4096
YT = UR + 2621440
WF = YT + 2621440
HF = WF + 1966080
ST = HF + 6291456
FS = 4352
FH = ST + 32768
FU = FH + 32*FS
FW = FU + 40*FS
FY = FW + 16*FS
WS_SIZE = 0x10000000
TICK1 = 32 << 20
LIMIT = 0x8000

XB = 0; WB = 65536; PREP = 114688
CV = 21216; URL = 16640
YL = 84992
PL = YL + 10240
CS = PL + 61440
LDS_SIZE = CS + 768

class Asm:
    def __init__(self):
        self.L = []; self.vm = []
    def __call__(self, s):
        for ln in s.strip("\n").split("\n"):
            ln = ln.strip()
            if ln: self.L.append(ln)
    def vmem(self, s, tag):
        self.L.append(s); self.vm.append(tag)
    def wait_vm(self, tag):
        if tag not in self.vm: return
        idx = max(i for i, t in enumerate(self.vm) if t == tag)
        n = len(self.vm) - 1 - idx
        assert n <= 63
        self.L.append(f"s_waitcnt vmcnt({n})")
        self.vm = self.vm[idx+1:]
    def srd(self, d, src, size):
        self(f"s_mov_b32 s{d}, s{src}\ns_mov_b32 s{d+1}, s{src+1}\ns_mov_b32 s{d+2}, {size}\ns_mov_b32 s{d+3}, 0x20000")
    def text(self): return "\n".join(self.L)

def vr(a, n): return f"v[{a}:{a+n-1}]" if n > 1 else f"v{a}"

class Opt:
    ticks = False
    cpf = False
    wpos = 1
    wout = 2
    upos = 2
    ustage = 2
    conv_prio = True
    uload = -1
    ucheck = 3
    xend = False; noprep = False; nog0 = False; nok = False; lead = 2
    wpre = (2, 2, 1)
opt = Opt()

TICKV = 255
def tick_init(A):
    if not opt.ticks: return
    A(f"v_mov_b32 v{TICKV}, 0")
    A(f"s_memtime s[90:91]\ns_waitcnt lgkmcnt(0)\nv_writelane_b32 v{TICKV}, s90, 60")
def tick(A, slot):
    if not opt.ticks: return
    A("s_memrealtime s[90:91]")
    A("s_waitcnt lgkmcnt(0)")
    A(f"v_writelane_b32 v{TICKV}, s90, {slot}")
def tick_cnt(A, sreg, slot):
    if not opt.ticks: return
    A(f"v_writelane_b32 v{TICKV}, s{sreg}, {slot}")
def tick_store(A, wavereg_off, vt):
    if not opt.ticks: return
    A(f"s_memtime s[90:91]\ns_waitcnt lgkmcnt(0)\nv_writelane_b32 v{TICKV}, s90, 61")
    tick(A, 62)
    A(f"s_lshl_b32 s92, s2, 3\ns_add_u32 s92, s92, s3\ns_add_u32 s92, s92, {wavereg_off}\ns_lshl_b32 s92, s92, 8\ns_add_u32 s92, s92, {TICK1}")
    A(f"v_lshlrev_b32 v{vt}, 2, v0")
    A(f"buffer_store_dword v{TICKV}, v{vt}, s[12:15], s92 offen")

NONCE = 96
def poll(A, lab, load, vchk, pre=None):
    A("s_mov_b32 s97, 0")
    if pre is not None:
        A.wait_vm(pre)
        A(f"v_cmp_ne_u32 vcc, s{NONCE}, v{vchk}")
        A("s_nop 1")
        A(f"s_cbranch_vccz {lab}_done")
    A(f"{lab}_loop:")
    A(load)
    A("s_add_u32 s97, s97, 1")
    A("s_waitcnt vmcnt(0)")
    A(f"v_cmp_ne_u32 vcc, s{NONCE}, v{vchk}")
    A(f"s_cmp_ge_u32 s97, {LIMIT}\ns_cbranch_scc1 {lab}_done")
    A(f"s_cbranch_vccnz {lab}_loop")
    A(f"{lab}_done:")
    if pre is None: A.vm = []

def mfma_order():
    rem = [(x, y) for x in range(8) for y in range(8) if x + y < 8]
    out = []
    while rem:
        cnt = {}
        for x, y in rem: cnt[x+y] = cnt.get(x+y, 0) + 1
        recent = [a+b for a, b in out[-3:]]
        cand = [p for p in rem if p[0]+p[1] not in recent] or rem
        cand.sort(key=lambda p: (-cnt[p[0]+p[1]], max(p)))
        out.append(cand[0]); rem.remove(cand[0])
    return out

def g1_loader(A, prepU, lab):
    A.vm = []
    VX = 4; VW = 8; T = 12
    KR = 40; VR_ = 62; SK = 80; PP = 24; FR = 140
    VWF = 246
    def issue(s):
        buf = s % 4
        A(f"s_add_u32 m0, s72, {buf*16384}")
        A("s_add_u32 s76, s74, s78")
        for i in range(4):
            A.vmem(f"buffer_load_dwordx4 v{VX+i}, s[4:7], s76 offen offset:{1024*i} lds", f"st{s}")
        A(f"s_add_u32 m0, s73, {buf*12288}")
        A("s_add_u32 s77, s75, s79")
        for i in range(3):
            A.vmem(f"buffer_load_dwordx4 v{VW+i}, s[8:11], s77 offen offset:{1024*i} lds", f"st{s}")
        if s < 9:
            A("s_add_u32 s78, s78, 128\ns_add_u32 s79, s79, 196608\ns_cmp_eq_u32 s78, 1280\ns_cselect_b32 s78, 0, s78\ns_cselect_b32 s79, 0, s79")
    def prep_loads():
        if prepU:
            A.srd(16, 34, 2621440)
            A.srd(20, 36, 2621440)
            A.srd(28, 38, 5120)
            A("s_cmp_ge_u32 s65, 10\ns_cselect_b32 s81, 1, 0\ns_cselect_b32 s82, 10, 0")
            A("s_lshl1_add_u32 s81, s64, s81")
            A("s_sub_u32 s82, s65, s82")
            A("s_lshl_b32 s83, s81, 2\ns_add_u32 s83, s83, s3\ns_lshl_b32 s83, s83, 2")
            A(f"v_add_u32 v{T}, s83, v2")
            A(f"v_and_b32 v{T+1}, 15, v0")
            A(f"v_mul_u32_u24 v{T+2}, 10240, v{T}")
            A(f"v_lshl_add_u32 v{T+2}, v{T+1}, 3, v{T+2}")
            A("s_lshl_b32 s84, s82, 7")
            A(f"v_add_u32 v{T+2}, s84, v{T+2}")
            A(f"v_subrev_u32 v{T+3}, 3840, v{T+2}")
            A(f"v_cmp_eq_u32 vcc, 0, v{T}")
            A(f"v_mov_b32 v{T+4}, 0x80000000")
            A(f"v_lshlrev_b32 v{T+5}, 5, v{T+1}")
            A(f"v_cndmask_b32 v{T+3}, v{T+3}, v{T+4}, vcc")
            A("s_lshl_b32 s84, s82, 9")
            A("s_movk_i32 s85, 3840\ns_movk_i32 s86, 7680")
            A.vmem(f"buffer_load_dwordx4 {vr(SK,4)}, v{T+5}, s[28:31], s84 offen", "prep")
            A.vmem(f"buffer_load_dwordx4 {vr(SK+4,4)}, v{T+5}, s[28:31], s84 offen offset:16", "prep")
            for r in range(3):
                A.vmem(f"buffer_load_dwordx2 {vr(KR+2*r,2)}, v{T+3}, s[16:19], 0 offen offset:{1280*r}", "prep")
            for r in range(8):
                so = ["0", "s85", "s86"][r // 3]
                A.vmem(f"buffer_load_dwordx2 {vr(KR+6+2*r,2)}, v{T+2}, s[16:19], {so} offen offset:{1280*(r%3)}", "prep")
            for r in range(8):
                so = ["0", "s85", "s86"][r // 3]
                A.vmem(f"buffer_load_dwordx2 {vr(VR_+2*r,2)}, v{T+2}, s[20:23], {so} offen offset:{1280*(r%3)}", "prep")
            A(f"v_mul_u32_u24 v{PP}, 272, v{T+1}")
            A(f"v_lshlrev_b32 v{T}, 4, v2")
            A(f"v_sub_u32 v{PP}, v{PP}, v{T}")
            A(f"s_lshl_b32 s84, s3, 6\ns_sub_u32 s84, {PREP+240}, s84")
            A(f"v_add_u32 v{PP}, s84, v{PP}")
            A(f"v_mul_u32_u24 v{PP+1}, 272, v2")
            A(f"v_lshl_add_u32 v{PP+1}, v{T+1}, 4, v{PP+1}")
            A(f"s_mul_i32 s84, s3, {16*272}\ns_add_u32 s84, s84, {PREP}")
            A(f"v_add_u32 v{PP+1}, s84, v{PP+1}")
            A(f"v_lshlrev_b32 v{PP+2}, 14, v2")
            A(f"v_lshl_add_u32 v{PP+2}, v{T+1}, 4, v{PP+2}")
            A(f"s_lshl_b32 s84, s82, 6\ns_add_u32 s84, s84, s3\ns_lshl_b32 s84, s84, 12")
            A(f"s_lshl_b32 s85, s81, 8\ns_sub_u32 s85, {UR+3840}, s85\ns_add_u32 s87, s84, s85")
            A("s_mov_b32 s88, 0x05040100\ns_mov_b32 s89, 0x07060302")
            A(f"s_lshl2_add_u32 s84, s82, s3\ns_mul_i32 s84, s84, {FS}\ns_lshl2_add_u32 s84, s81, s84\ns_add_u32 s80, s84, {FU}")
        else:
            A.srd(16, 52, 1966080)
            A("s_mul_i32 s81, s64, 12\ns_add_u32 s81, s81, s65\ns_sub_u32 s81, s81, 20")
            A("s_mul_i32 s82, s81, 20480\ns_mul_i32 s83, s3, 320\ns_add_u32 s82, s82, s83")
            A(f"s_mul_i32 s83, s3, 5120\ns_add_u32 s83, s83, {PREP}")
            A(f"v_lshlrev_b32 v{T+1}, 4, v0")
            for n in range(5):
                A(f"v_add_u32 v{T}, {64*n}, v0")
                A(f"v_mul_u32_u24 v{T}, 205, v{T}")
                A(f"v_lshrrev_b32 v{T}, 12, v{T}")
                if n == 0: A("s_mov_b32 m0, s83")
                if n == 4: A(f"s_add_u32 m0, s83, 4096\ns_add_u32 s82, s82, 4096")
                A(f"v_mad_u32_u24 v{T}, v{T}, s94, v{T+1}")
                A.vmem(f"buffer_load_dwordx4 v{T}, s[16:19], s82 offen offset:{1024*(n%4)} lds", "prep")
            A(f"v_lshrrev_b32 v{T}, 5, v0")
            A(f"v_bfe_u32 v{T+1}, v0, 2, 2")
            A(f"v_lshl_add_u32 v{T+1}, v{T}, 2, v{T+1}")
            A(f"v_mul_u32_u24 v{PP}, 320, v{T+1}")
            A(f"v_and_b32 v{T+1}, 1, v2")
            A(f"v_mul_u32_u24 v{T+2}, 160, v{T+1}")
            A(f"v_and_b32 v{T+3}, 3, v0")
            A(f"v_mul_u32_u24 v{T+3}, 40, v{T+3}")
            A(f"v_add_u32 v{T+2}, v{T+3}, v{T+2}")
            A(f"v_add3_u32 v{PP}, v{PP}, v{T+2}, s83")
            A(f"v_mul_u32_u24 v{PP+1}, 245760, v{T+1}")
            A(f"v_lshl_add_u32 v{PP+1}, v{T}, 8, v{PP+1}")
            A(f"v_and_b32 v{T+3}, 15, v0")
            A(f"v_lshl_add_u32 v{PP+1}, v{T+3}, 4, v{PP+1}")
            A(f"s_mul_i32 s84, s3, 491520\ns_lshr_b32 s85, s81, 1\ns_mul_i32 s85, s85, 5120\ns_add_u32 s84, s84, s85")
            A(f"s_and_b32 s85, s81, 1\ns_lshl_b32 s85, s85, 9\ns_add_u32 s84, s84, s85\ns_add_u32 s87, s84, {WF}\ns_add_u32 s88, s87, 4096")
            A(f"s_lshr_b32 s84, s64, 1\ns_lshl2_add_u32 s84, s3, s84\ns_mul_i32 s84, s84, {FS}")
            A(f"s_and_b32 s85, s64, 1\ns_mul_i32 s85, s85, 12\ns_add_u32 s85, s85, s65\ns_lshl2_add_u32 s84, s85, s84\ns_add_u32 s80, s84, {FW-80}")
    def prepU_chan(e):
        d = e >> 1; hf = e & 1
        sel = "s89" if hf else "s88"
        P = FR; K = FR + 10; O = FR + 18
        for t in range(-2, 8):
            A(f"v_perm_b32 v{P+t+2}, v{KR+2*(t+2)+d}, v{KR+2*(t+3)+d}, {sel}")
        for t in range(8):
            A(f"v_dot2_f32_bf16 v{K+t}, v{P+t}, v{SK+2*e+1}, 0")
        for t in range(8):
            A(f"v_dot2c_f32_bf16 v{K+t}, v{P+t+2}, v{SK+2*e}")
        for t in range(8):
            if hf: A(f"v_and_b32 v{P+t}, 0xffff0000, v{VR_+2*t+d}")
            else: A(f"v_lshlrev_b32 v{P+t}, 16, v{VR_+2*t+d}")
        for t in range(8):
            A(f"v_mul_f32 v{K+t}, v{K+t}, v{P+t}")
        for i in range(4):
            A(f"v_cvt_pk_bf16_f32 v{O+i}, v{K+7-2*i}, v{K+6-2*i}")
        A(f"ds_write_b128 v{PP}, {vr(O,4)} offset:{e*16*272}")
    def prepU_out():
        for n in range(4):
            A(f"ds_read_b128 {vr(FR+4*n,4)}, v{PP+1} offset:{n*4*272}")
        for n in range(4):
            A(f"s_waitcnt lgkmcnt({3-n})")
            A.vmem(f"buffer_store_dwordx4 {vr(FR+4*n,4)}, v{PP+2}, s[12:15], s87 offen sc1", "pst")
            if n < 3: A("s_add_u32 s87, s87, 65536")
    def prepW_out():
        for n in range(5):
            for h in range(2):
                A(f"ds_read_b64_tr_b16 {vr(FR+4*n+2*h,2)}, v{PP} offset:{h*2560+8*n}")
        for n in range(5):
            A(f"s_waitcnt lgkmcnt({8-2*n})")
            A.vmem(f"buffer_store_dwordx4 {vr(FR+4*n,4)}, v{PP+1}, s[12:15], {'s88' if n == 4 else 's87'} offen offset:{1024*(n%4)} sc1", "pst")
    flagged = [False]
    def flag(force=False):
        if flagged[0] or not stored[0]: return
        if "pst" in A.vm:
            if not force: return
            A.wait_vm("pst")
        flagged[0] = True
        A(f"v_mov_b32 v{T}, 0\nv_mov_b32 v{T+1}, s{NONCE}")
        A.vmem(f"buffer_store_dword v{T+1}, v{T}, s[12:15], s80 offen sc1", "flag")
        tick(A, 31)
    stored = [False]
    pos = opt.upos if prepU else opt.wpos
    if opt.noprep: pos = 99
    tick(A, 1)
    for s in range(opt.lead):
        if pos == s: prep_loads()
        issue(s)
    if pos == 2 and opt.lead == 2: prep_loads()
    A("s_and_b32 s84, s65, 3\ns_mul_i32 s84, s84, 3\ns_lshr_b32 s85, s65, 2\ns_add_u32 s84, s84, s85\ns_cmp_ge_u32 s84, 12\ns_cselect_b32 s85, 12, 0\ns_sub_u32 s84, s84, s85")
    A(f"s_mul_i32 s98, s70, 196608\ns_mul_i32 s85, s3, {12*4096}\ns_add_u32 s98, s98, s85\ns_add_u32 s98, s98, {HF}")
    A(f"s_mul_i32 s99, s71, 245760\ns_mul_i32 s85, s3, {12*5120}\ns_add_u32 s99, s99, s85\ns_add_u32 s99, s99, {WF}")
    A("s_lshl_b32 s100, s84, 12\ns_mul_i32 s101, s84, 5120")
    A(f"s_lshr_b32 s93, s71, 1\ns_lshl2_add_u32 s93, s93, s3\ns_mul_i32 s93, s93, {FS}\ns_add_u32 s93, s93, {FW}")
    A(f"v_min_u32 v{VWF+1}, 23, v0\nv_lshlrev_b32 v{VWF+1}, 2, v{VWF+1}")
    A("v_lshlrev_b32 v1, 4, v0\nv_add_u32 v3, 4096, v1")
    A("s_waitcnt lgkmcnt(0)")
    A(f"s_add_u32 s{NONCE}, s{NONCE}, 0x9e3779b9")
    wfl = f"buffer_load_dword v{VWF}, v{VWF+1}, s[12:15], s93 offen sc1"
    tick(A, 2)
    nw = [0]
    def wissue(n):
        for _ in range(n):
            g2_wissue(A, nw[0]); nw[0] += 1
    for s in range(10):
        A.wait_vm(f"st{s}")
        tick(A, 10 + s)
        A("s_barrier")
        tick(A, 20 + s)
        if s == 6: A.vmem(wfl, "wfl")
        if s + opt.lead < 10: issue(s + opt.lead)
        if opt.noprep: continue
        if pos == s + 3: prep_loads()
        flag()
        if prepU:
            us = opt.ustage
            if s == us: A.wait_vm("prep")
            if us <= s < us + 4:
                A("s_nop 2")
                prepU_chan(s - us)
                if s == us + 3: A("s_waitcnt lgkmcnt(0)")
            if s == us + 4: prepU_out(); stored[0] = True
        else:
            if s == opt.wout:
                A.wait_vm("prep")
                prepW_out(); stored[0] = True
        if s == 8:
            poll(A, lab + "_wp", wfl, VWF, pre="wfl")
            tick_cnt(A, 97, 58)
            wissue(opt.wpre[0])
        if s == 9:
            flag(True)
            wissue(opt.wpre[1])
    tick(A, 30)
    A("s_barrier")
    if opt.xend:
        A("s_waitcnt vmcnt(0)")
        tick_store(A, 4, 250)
        A("s_endpgm")
        return
    assert flagged[0]
    wissue(opt.wpre[2])
    assert nw[0] == 5

WREG = 16; HREG = 116; GACC = 164
def g2_wissue(A, s):
    b = WREG + 20*(s % 5)
    A("s_add_u32 s81, s99, s101")
    for m in range(5):
        A.vmem(f"buffer_load_dwordx4 {vr(b+4*m,4)}, v{3 if m == 4 else 1}, s[12:15], s81 offen offset:{1024*(m%4)}", f"w{s}")
    if s < 11:
        A(f"s_add_u32 s101, s101, 5120\ns_cmp_eq_u32 s101, {12*5120}\ns_cselect_b32 s101, 0, s101")

def g1_gemm2(A):
    VH = 4
    T = 8
    A.srd(16, 54, 1280)
    A.srd(24, 58, 2621440)
    A(f"v_mul_u32_u24 v{T}, 40, v2")
    A("s_mul_i32 s82, s71, 160")
    A(f"buffer_load_dwordx4 {vr(HREG,4)}, v{T}, s[16:19], s82 offen")
    A(f"buffer_load_dwordx4 {vr(HREG+4,4)}, v{T}, s[16:19], s82 offen offset:16")
    A(f"buffer_load_dwordx2 {vr(HREG+8,2)}, v{T}, s[16:19], s82 offen offset:32")
    A(f"v_and_b32 v{T+2}, 15, v0\nv_mul_u32_u24 v{T+1}, 1280, v{T+2}\nv_add_u32 v{T+1}, v{T+1}, v{T}")
    A(f"s_lshl2_add_u32 s83, s70, s3\ns_mul_i32 s84, s83, {16*1280}\ns_add_u32 s82, s82, s84")
    A(f"v_lshlrev_b32 v{T+2}, 4, v{T+2}")
    A(f"s_lshl_b32 s83, s83, 8\ns_add_u32 s83, s83, {ST}")
    for j in range(4):
        A(f"s_xor_b32 s84, s3, {j}\ns_lshl_b32 s84, s84, 10\nv_add_u32 v{VH+j}, s84, v1")
    A(f"s_mul_i32 s84, s70, {FS}\ns_lshl_b32 s85, s3, 5\ns_add_u32 s84, s84, s85\ns_add_u32 s84, s84, {FH}")
    A(f"v_and_b32 v{T+3}, 7, v0\nv_lshlrev_b32 v{T+3}, 2, v{T+3}")
    A("s_waitcnt vmcnt(0)")
    for i in range(10):
        A(f"v_lshlrev_b32 v{GACC+2*i}, 16, v{HREG+i}\nv_and_b32 v{GACC+2*i+1}, 0xffff0000, v{HREG+i}")
    tick(A, 32)
    poll(A, "G1_hp", f"buffer_load_dword v{T+4}, v{T+3}, s[12:15], s84 offen sc1", T+4)
    tick(A, 33)
    tick_cnt(A, 97, 63)
    A.vm = []
    def hissue(s):
        b = HREG + 16*(s % 3)
        A("s_add_u32 s80, s98, s100")
        for j in range(4):
            A.vmem(f"buffer_load_dwordx4 {vr(b+4*j,4)}, v{VH+j}, s[12:15], s80 offen", f"h{s}")
        if s < 11:
            A(f"s_add_u32 s100, s100, 4096\ns_cmp_eq_u32 s100, {12*4096}\ns_cselect_b32 s100, 0, s100")
    for s in range(3): hissue(s)
    for j in range(1, 4):
        A(f"s_xor_b32 s84, s3, {j}\ns_mul_i32 s84, s84, 15360\ns_add_u32 s84, s84, {PL+(j-1)*5120}\nv_add_u32 v{10+j}, s84, v1")
    A(f"s_mul_i32 s84, s3, 15360\ns_add_u32 s84, s84, {PL}\nv_add_u32 v14, s84, v1")
    A(f"v_bfe_u32 v244, v0, 2, 2\nv_mad_u32_u24 v15, v2, 20, v244\nv_lshrrev_b32 v244, 1, v15\nv_xor_b32 v244, s3, v244\nv_and_b32 v244, 3, v244")
    A(f"v_lshlrev_b32 v15, 7, v15\nv_lshl_add_u32 v15, v244, 5, v15\nv_and_b32 v244, 3, v0\nv_lshl_add_u32 v15, v244, 3, v15\nv_add_u32 v15, {YL}, v15\nv_xor_b32 v244, 64, v15")
    QR = WREG + 40
    SR = QR + 12
    QG = WREG + 60
    OM = WREG + 56
    stl = f"buffer_load_dwordx4 {vr(SR,4)}, v{T+2}, s[12:15], s83 offen sc1"
    for s in range(12):
        wb = WREG + 20*(s % 5); hb = HREG + 16*(s % 3)
        if f"w{s}" in A.vm and A.vm.index(f"w{s}") > A.vm.index(f"h{s}"): A.wait_vm(f"w{s}")
        A.wait_vm(f"h{s}")
        tick(A, 34 + s)
        for j in range(4):
            for m in range(5):
                acc = vr(GACC+4*(5*j+m), 4)
                A(f"v_mfma_f32_16x16x32_bf16 {acc}, {vr(wb+4*m,4)}, {vr(hb+4*j,4)}, {acc if (s or j == 0) else 0}")
        if s + 3 < 12: hissue(s + 3)
        if s + 5 < 12: g2_wissue(A, s + 5)
        if s == 7:
            A.vmem(f"buffer_load_dwordx4 {vr(QR,4)}, v{T+1}, s[4:7], s82 offen", "q")
            A.vmem(f"buffer_load_dwordx4 {vr(QR+4,4)}, v{T+1}, s[4:7], s82 offen offset:16", "q")
            A.vmem(f"buffer_load_dwordx2 {vr(QR+8,2)}, v{T+1}, s[4:7], s82 offen offset:32", "q")
            A.vmem(stl, "q")
        if s == 10:
            poll(A, "G1_sp", stl, SR+3, pre="q")
            for i in range(10):
                A(f"v_lshlrev_b32 v{QG+2*i}, 16, v{QR+i}\nv_and_b32 v{QG+2*i+1}, 0xffff0000, v{QR+i}")
            A(f"v_sub_f32 v{OM}, 1.0, v{SR+2}\nv_sub_f32 v{OM+1}, 1.0, v{SR+2}\nv_mov_b32 v{SR+3}, v{SR+2}")
            for i in range(10):
                A(f"v_pk_mul_f32 {vr(QG+2*i,2)}, {vr(QG+2*i,2)}, {vr(SR+2,2)}")
    tick(A, 46)
    for j in range(1, 4):
        if j == 3: A("s_nop 7")
        for m in range(5):
            A(f"ds_write_b128 v{10+j}, {vr(GACC+4*(5*j+m),4)} offset:{1024*m}")
    A("s_waitcnt lgkmcnt(0)")
    tick(A, 47)
    A("s_barrier")
    tick(A, 48)
    PR = GACC + 20
    YR = HREG
    for m in range(5):
        A(f"ds_read_b64_tr_b16 {vr(YR+2*m,2)}, v{244 if m & 1 else 15} offset:{512*m}")
    for j in range(3):
        for m in range(5):
            A(f"ds_read_b128 {vr(PR+20*j+4*m,4)}, v14 offset:{5120*j+1024*m}")
    A("s_waitcnt lgkmcnt(15)")
    YU = HREG + 10
    for i in range(10):
        A(f"v_lshlrev_b32 v{YU+2*i}, 16, v{YR+i}\nv_and_b32 v{YU+2*i+1}, 0xffff0000, v{YR+i}")
    for i in range(10):
        A(f"v_pk_mul_f32 {vr(YU+2*i,2)}, {vr(YU+2*i,2)}, {vr(QG+2*i,2)}")
    for j in range(3):
        A(f"s_waitcnt lgkmcnt({10-5*j})")
        for i in range(10):
            A(f"v_pk_add_f32 {vr(GACC+2*i,2)}, {vr(GACC+2*i,2)}, {vr(PR+20*j+2*i,2)}")
    for i in range(10):
        A(f"v_pk_fma_f32 {vr(GACC+2*i,2)}, {vr(GACC+2*i,2)}, {vr(OM,2)}, {vr(YU+2*i,2)}")
    for i in range(10):
        A(f"v_cvt_pk_bf16_f32 v{YR+i}, v{GACC+2*i}, v{GACC+2*i+1}")
        if i == 3: A(f"buffer_store_dwordx4 {vr(YR,4)}, v{T+1}, s[24:27], s82 offen")
        if i == 7: A(f"buffer_store_dwordx4 {vr(YR+4,4)}, v{T+1}, s[24:27], s82 offen offset:16")
        if i == 9: A(f"buffer_store_dwordx2 {vr(YR+8,2)}, v{T+1}, s[24:27], s82 offen offset:32")
    if opt.ticks:
        tick(A, 49)
        A("s_waitcnt vmcnt(0)")
        tick(A, 50)
        tick_store(A, 4, 250)
    A("s_endpgm")

def g0(A):
    A.vm = []
    VA = 4
    VB = 8
    STR = 12
    SET = [16, 32, 48, 64]
    ACC = 80
    CSA = 128; ONES = 132
    CSR = 132; B1R = 180
    KW = 228; VD = 252; VUF = 253
    T = 136
    Q = 140; GWR = 150; B1V = 160
    A("v_and_b32 v1, 31, v0\nv_lshrrev_b32 v2, 5, v0")
    A(f"v_lshlrev_b32 v{T}, 4, v1\nv_lshlrev_b32 v{T+1}, 3, v1")
    A(f"v_mul_u32_u24 v{T+2}, 1280, v2\nv_add_u32 v{T+3}, v{T+2}, v{T+1}\nv_add_u32 v{T+2}, v{T+2}, v{T}")
    A("s_lshl4_add_u32 s72, s68, s69\ns_lshl2_add_u32 s72, s72, s3")
    A("s_mul_i32 s73, s72, 2560")
    A("s_cmp_eq_u32 s3, 3\ns_cselect_b32 s78, 0, s3")
    A("s_mul_i32 s74, s69, 192\ns_lshl_b32 s75, s78, 6\ns_add_u32 s74, s74, s75")
    A(f"v_lshlrev_b32 v{T+4 if False else 161}, 1, v1")
    A("s_waitcnt lgkmcnt(0)")
    A(f"s_load_dword s{NONCE}, s[62:63], {EOFF}")
    A.srd(4, 32, 2621440)
    A.srd(8, 56, 1280)
    A.vmem(f"buffer_load_dwordx4 {vr(Q,4)}, v{T+2}, s[4:7], s73 offen", "sq")
    A.vmem(f"buffer_load_dwordx4 {vr(Q+4,4)}, v{T+2}, s[4:7], s73 offen offset:512", "sq")
    A.vmem(f"buffer_load_dwordx2 {vr(Q+8,2)}, v{T+3}, s[4:7], s73 offen offset:1024", "sq")
    A.vmem(f"buffer_load_dwordx4 {vr(GWR,4)}, v{T}, s[8:11], 0 offen", "sq")
    A.vmem(f"buffer_load_dwordx4 {vr(GWR+4,4)}, v{T}, s[8:11], 0 offen offset:512", "sq")
    A.vmem(f"buffer_load_dwordx2 {vr(GWR+8,2)}, v{T+1}, s[8:11], 0 offen offset:1024", "sq")
    A.srd(16, 50, 3072)
    A.srd(12, 62, WS_SIZE)
    A.vmem(f"buffer_load_ushort v{B1V}, v161, s[16:19], s74 offen", "sq")
    tick(A, 1)
    A(f"v_bfe_u32 v{T+1}, v0, 2, 2\nv_lshl_add_u32 v{T+1}, v2, 3, v{T+1}")
    A(f"v_mul_u32_u24 v{VA}, 192, v{T+1}")
    A(f"v_bfe_u32 v{T+1}, v0, 4, 1\nv_lshl_add_u32 v{VA}, v{T+1}, 5, v{VA}")
    A(f"v_and_b32 v{T+2}, 3, v0\nv_lshl_add_u32 v{VA}, v{T+2}, 3, v{VA}")
    A("s_add_u32 s79, s78, 1\ns_cmp_eq_u32 s79, 3\ns_cselect_b32 s79, 0, s79")
    A("s_add_u32 s80, s79, 1\ns_cmp_eq_u32 s80, 3\ns_cselect_b32 s80, 0, s80")
    for i in (2, 1, 0):
        A(f"s_lshl_b32 s75, s{78+i}, 6\ns_add_u32 s75, s75, {WB}\nv_add_u32 v{VA+i}, s75, v{VA}")
    A(f"v_bfe_u32 v{T+2}, v0, 1, 3\nv_xor_b32 v{T+2}, v{T+2}, v2")
    A(f"v_lshlrev_b32 v{T+3}, 7, v1")
    A(f"v_lshl_add_u32 v{VB}, v{T+2}, 4, v{T+3}")
    A(f"s_lshl_b32 s75, s3, 12\nv_add_u32 v{VB}, s75, v{VB}")
    for j in range(1, 4): A(f"v_xor_b32 v{VB+j}, {32*j}, v{VB}")
    A(f"v_and_b32 v{T+2}, 15, v0\nv_cmp_eq_u32 vcc, v{T+2}, v{T+1}\nv_mov_b32 v{T+3}, 0x3f803f80")
    A(f"v_mov_b32 v{CSA}, 0\nv_mov_b32 v{CSA+1}, 0")
    for i in range(4): A(f"v_cndmask_b32 v{ONES+i}, 0, v{T+3}, vcc")
    A(f"v_mov_b32 v{CSA+2}, 0\nv_mov_b32 v{CSA+3}, 0")
    for i in range(48): A(f"v_mov_b32 v{ACC+i}, 0")
    A(f"v_lshlrev_b32 v3, 10, v{T+1}\nv_lshl_add_u32 v3, v2, 8, v3\nv_lshl_add_u32 v3, v{T+2}, 4, v3")
    A("s_lshr_b32 s76, s3, 1\ns_lshl1_add_u32 s81, s68, s76\ns_mul_i32 s76, s81, 196608")
    A("s_mul_i32 s77, s69, 12288\ns_add_u32 s76, s76, s77\ns_and_b32 s77, s3, 1\ns_lshl_b32 s82, s77, 11\ns_add_u32 s76, s76, s82")
    A(f"s_add_u32 s76, s76, {HF}")
    A(f"s_mul_i32 s81, s81, {FS}\ns_lshl1_add_u32 s77, s69, s77\ns_lshl2_add_u32 s81, s77, s81\ns_add_u32 s81, s81, {FH}")
    A("s_mov_b32 s73, 0\ns_mov_b32 s95, 0x3f803f80\ns_mov_b32 s98, -49152\ns_mov_b32 s99, -36864")
    A("v_mov_b32 v162, 0\nv_mov_b32 v163, 0\nv_mov_b32 v164, 0")
    def rd(j, k):
        b = SET[j]
        if k == 0: return f"ds_read_b128 {vr(b,4)}, v{VB+j}"
        m = (k-1) >> 1; h = (k-1) & 1
        return f"ds_read_b64_tr_b16 {vr(b+4+4*m+2*h,2)}, v{VA+m} offset:{(16*j+4*h)*192}"
    A("s_waitcnt lgkmcnt(0)")
    A(f"s_add_u32 s{NONCE}, s{NONCE}, 0x9e3779b9")
    tick(A, 2)
    A("s_barrier")
    tick(A, 20)
    for j in range(2):
        for k in range(7): A(rd(j, k))
    A.wait_vm("sq")
    SX = 162; SQ = 163; SG = 164
    for i in range(10):
        A(f"v_dot2c_f32_bf16 v{SX}, s95, v{Q+i}\nv_dot2c_f32_bf16 v{SQ}, v{Q+i}, v{Q+i}\nv_dot2c_f32_bf16 v{SG}, v{Q+i}, v{GWR+i}")
    A(f"v_lshlrev_b32 v{B1V}, 16, v{B1V}")
    A(f"s_lshl_b32 s75, s78, 7\ns_add_u32 s75, s75, {CS}")
    A(f"v_lshlrev_b32 v{T}, 2, v1\nv_add_u32 v{T}, s75, v{T}")
    A(f"ds_write_b32 v{T}, v{B1V} offset:384")
    for dpp in ("quad_perm:[1,0,3,2] row_mask:0xf bank_mask:0xf", "quad_perm:[2,3,0,1] row_mask:0xf bank_mask:0xf",
                "row_half_mirror row_mask:0xf bank_mask:0xf", "row_mirror row_mask:0xf bank_mask:0xf",
                "row_bcast:15 row_mask:0xa bank_mask:0xf"):
        for r in (SX, SQ, SG):
            A(f"v_add_f32_dpp v{r}, v{r}, v{r} {dpp}")
    R = 168
    A(f"v_mul_f32 v{SX}, 0x3acccccd, v{SX}\nv_mul_f32 v{SQ}, 0x3acccccd, v{SQ}\nv_mul_f32 v{SG}, 0xbfb8aa3b, v{SG}")
    A(f"v_fma_f32 v{SQ}, -v{SX}, v{SX}, v{SQ}")
    A(f"v_exp_f32 v{SG}, v{SG}")
    A(f"v_max_f32 v{SQ}, 0, v{SQ}")
    A(f"v_add_f32 v{SQ}, 0x3727c5ac, v{SQ}")
    A(f"v_add_f32 v{SG}, 1.0, v{SG}")
    A(f"v_rsq_f32 v{R}, v{SQ}")
    A(f"v_rcp_f32 v{R+2}, v{SG}")
    A(f"v_mov_b32 v{R+3}, s{NONCE}")
    A(f"v_mul_f32 v{R+1}, -1.0, v{SX}" if False else f"v_sub_f32 v{SX}, 0, v{SX}")
    A(f"v_mul_f32 v{R+1}, v{SX}, v{R}")
    A(f"v_lshlrev_b32 v{T+1}, 4, v2")
    A(f"s_lshl_b32 s72, s72, 5\ns_add_u32 s72, s72, {ST}")
    A("s_mov_b32 exec_lo, 0x80000000\ns_mov_b32 exec_hi, 0x80000000")
    A.vmem(f"buffer_store_dwordx4 {vr(R,4)}, v{T+1}, s[12:15], s72 offen sc1", "rec")
    A("s_mov_b64 exec, -1")
    A(f"v_lshlrev_b32 v7, 6, v0\nv_and_b32 v7, 64, v7\nv_and_b32 v{T+1}, 48, v0\nv_add3_u32 v7, v7, v{T+1}, s75")
    A("s_cmp_ge_u32 s65, 20\ns_cbranch_scc1 G0_nok")
    if opt.nok: A("s_branch G0_nok")
    A("s_mul_i32 s83, s64, 20\ns_add_u32 s83, s83, s65\ns_lshl2_add_u32 s83, s83, s3")
    A("s_lshl_b32 s84, s83, 12")
    A("s_add_u32 s20, s40, s84\ns_addc_u32 s21, s41, 0\ns_movk_i32 s22, 4096\ns_mov_b32 s23, 0x20000")
    A.srd(24, 42, 1280)
    A(f"v_lshlrev_b32 v{T}, 4, v0\ns_lshl_b32 s85, s83, 1\nv_mov_b32 v{T+1}, 0")
    for n in range(4):
        A(f"buffer_load_dwordx4 {vr(KW+6*n,4)}, v{T}, s[20:23], 0 offen offset:{1024*n}")
        A(f"buffer_load_dwordx2 {vr(KW+6*n+4,2)}, v{T}, s[20:23], 0 offen offset:{1024*n+16}")
    A(f"buffer_load_ushort v{VD}, v{T+1}, s[24:27], s85 offen")
    A("G0_nok:")
    tick(A, 3)
    if opt.ticks: pass
    first = [True]
    def stage(last):
        for j in range(4):
            b = SET[j]
            doread = not (last and j >= 2)
            if j == 2 and not last:
                A("s_add_u32 s73, s73, 1\ns_and_b32 s74, s73, 3\ns_cselect_b32 s74, 16384, s98\ns_cselect_b32 s75, 12288, s99")
                for i in range(3): A(f"v_add_u32 v{VA+i}, s75, v{VA+i}")
                for i in range(4): A(f"v_add_u32 v{VB+i}, s74, v{VB+i}")
                if opt.lead == 3: A("s_waitcnt lgkmcnt(0)")
                A("s_barrier")
            if opt.nog0: continue
            A(f"s_waitcnt lgkmcnt({0 if (last and j == 3) else 7})")
            jn = (j + 2) & 3
            rds = [rd(jn, k) for k in range(7)] if doread else []
            cs = f"v_mfma_f32_16x16x32_bf16 {vr(CSA,4)}, {vr(b+4,4)}, {vr(ONES,4)}, {vr(CSA,4)}"
            if last and j == 3: A(cs)
            for m in range(3):
                A(f"v_mfma_f32_32x32x16_bf16 {vr(ACC+16*m,16)}, {vr(b+4+4*m,4)}, {vr(b,4)}, {vr(ACC+16*m,16)}")
                for r in rds[[0, 3, 5][m]:[3, 5, 7][m]]: A(r)
                if last and j == 0 and m == 0:
                    A(f"v_lshlrev_b32 v{T}, 4, v1")
                    A(f"s_lshl2_add_u32 s72, s68, s3\ns_lshl_b32 s72, s72, 9\ns_add_u32 s72, s72, {ST}")
                    A(f"buffer_load_dwordx4 {vr(STR,4)}, v{T}, s[12:15], s72 offen sc1")
                if last and j == 3 and m == 2:
                    A("s_mov_b32 exec_lo, 0x00030003\ns_mov_b32 exec_hi, 0x00030003")
                    A(f"ds_write_b128 v7, {vr(CSA,4)}")
                    A("s_mov_b64 exec, -1")
            if not (last and j == 3): A(cs)
    A("s_waitcnt lgkmcnt(0)")
    A("G0_loop:")
    stage(False)
    A("s_cmp_lt_u32 s73, 9\ns_cbranch_scc1 G0_loop")
    stage(True)
    A(f"v_lshlrev_b32 v7, 4, v2\nv_add_u32 v7, {CS}, v7")
    for i in range(3):
        A(f"s_lshl_b32 s75, s{78+i}, 7\nv_add_u32 v{VA+i}, s75, v7")
    A("s_waitcnt lgkmcnt(0)")
    tick(A, 4)
    A("s_barrier")
    tick(A, 5)
    if opt.xend:
        A("s_waitcnt vmcnt(0)")
        tick_store(A, 0, 250)
        A("s_endpgm")
        return
    for m in range(3):
        for qq in range(4):
            A(f"ds_read_b128 {vr(CSR+16*m+4*qq,4)}, v{VA+m} offset:{32*qq}")
            A(f"ds_read_b128 {vr(B1R+16*m+4*qq,4)}, v{VA+m} offset:{384+32*qq}")
    TT = 50
    A(f"v_lshlrev_b32 v{TT}, 4, v1")
    A.vm = ["x"]
    poll(A, "G0_sp", f"buffer_load_dwordx4 {vr(STR,4)}, v{TT}, s[12:15], s72 offen sc1", STR+3, pre="x")
    A("s_min_u32 s85, s65, 19\ns_mul_i32 s86, s64, 20\ns_add_u32 s85, s85, s86\ns_lshr_b32 s85, s85, 4\ns_lshl2_add_u32 s85, s85, s3")
    A(f"s_mul_i32 s85, s85, {FS}\ns_add_u32 s85, s85, {FU}")
    A(f"v_and_b32 v{TT+1}, 15, v0\nv_lshlrev_b32 v{TT+1}, 2, v{TT+1}")
    ufl = f"buffer_load_dword v{VUF}, v{TT+1}, s[12:15], s85 offen sc1"
    A.vm = []
    def udma():
        A("s_cmp_ge_u32 s65, 20\ns_cbranch_scc1 G0_nou")
        poll(A, "G0_up", ufl, VUF, pre="ufl")
        tick_cnt(A, 97, 58)
        A(f"s_mul_i32 s86, s3, {CV}")
        A(f"s_add_u32 m0, s86, {URL}")
        A(f"s_add_u32 s87, s84, {UR}")
        A(f"v_lshlrev_b32 v{TT}, 4, v0")
        for n in range(4):
            A.vmem(f"buffer_load_dwordx4 v{TT}, s[12:15], s87 offen offset:{1024*n} lds", "u")
        A("G0_nou:")
    RS = 16; NM = 18; CA = 20; CB = 22; ONE = 24
    A(f"v_mov_b32 v{CA}, 0xc0135761\nv_mov_b32 v{CA+1}, 0xc0135761")
    A(f"v_mov_b32 v{CB}, 0xbdd2d3e8\nv_mov_b32 v{CB+1}, 0xbdd2d3e8")
    A(f"v_mov_b32 v{ONE}, 1.0\nv_mov_b32 v{ONE+1}, 1.0")
    A(f"v_mov_b32 v{RS}, v{STR}\nv_mov_b32 v{RS+1}, v{STR}\nv_mov_b32 v{NM}, v{STR+1}\nv_mov_b32 v{NM+1}, v{STR+1}")
    tick(A, 6)
    if opt.uload < 0: A.vmem(ufl, "ufl")
    Z = 26; E = 34; O = 42
    for m in range(3):
        A(f"s_lshl_b32 s75, s{78+m}, 12\ns_add_u32 s75, s75, s76")
        A(f"s_waitcnt lgkmcnt({min(15, 16-8*m)})" if m else "s_waitcnt lgkmcnt(15)")
        for half in range(2):
            q0 = 16*m + 8*half
            o = O + 4*half
            for p in range(4):
                A(f"v_pk_fma_f32 {vr(CSR+q0+2*p,2)}, {vr(CSR+q0+2*p,2)}, {vr(NM,2)}, {vr(B1R+q0+2*p,2)}")
            for p in range(4):
                A(f"v_pk_fma_f32 {vr(Z+2*p,2)}, {vr(ACC+q0+2*p,2)}, {vr(RS,2)}, {vr(CSR+q0+2*p,2)}")
            for p in range(4):
                A(f"v_pk_mul_f32 {vr(E+2*p,2)}, {vr(Z+2*p,2)}, {vr(Z+2*p,2)}")
            for p in range(4):
                A(f"v_pk_fma_f32 {vr(E+2*p,2)}, {vr(E+2*p,2)}, {vr(CB,2)}, {vr(CA,2)}")
            for p in range(4):
                A(f"v_pk_mul_f32 {vr(E+2*p,2)}, {vr(E+2*p,2)}, {vr(Z+2*p,2)}")
            for i in range(8):
                A(f"v_exp_f32 v{E+i}, v{E+i}")
            for p in range(4):
                A(f"v_pk_add_f32 {vr(E+2*p,2)}, {vr(E+2*p,2)}, {vr(ONE,2)}")
            for i in range(8):
                A(f"v_rcp_f32 v{E+i}, v{E+i}")
            for p in range(4):
                A(f"v_pk_mul_f32 {vr(E+2*p,2)}, {vr(E+2*p,2)}, {vr(Z+2*p,2)}")
            for p in range(4):
                A(f"v_cvt_pk_bf16_f32 v{o+p}, v{E+2*p}, v{E+2*p+1}")
            A.vmem(f"buffer_store_dwordx4 {vr(o,4)}, v3, s[12:15], s75 offen offset:{512*half} sc1", "h")
            if 2*m + half == opt.uload: A.vmem(ufl, "ufl")
            if 2*m + half == opt.ucheck: udma()
    tick(A, 7)
    A(f"v_mov_b32 v12, 0\nv_mov_b32 v13, s{NONCE}")
    A("s_cmp_ge_u32 s65, 20\ns_cbranch_scc1 G0_noconv")
    if opt.conv_prio: A("s_setprio 2")
    Zr = 52
    A(f"v_mov_b32 v{Zr}, 0\nv_mov_b32 v{Zr+1}, 0\nv_mov_b32 v{Zr+2}, 0\nv_mov_b32 v{Zr+3}, 0")
    A("v_min_u32 v5, 29, v0\nv_lshlrev_b32 v5, 4, v5\nv_add_u32 v5, s86, v5")
    A(f"ds_write_b128 v5, {vr(Zr,4)} offset:{URL+4096}")
    A("v_bfe_u32 v5, v0, 1, 2\nv_mul_u32_u24 v5, 4160, v5\nv_and_b32 v6, 1, v0\nv_lshl_add_u32 v5, v6, 4, v5\nv_add_u32 v5, s86, v5")
    A(f"ds_write_b128 v5, {vr(Zr,4)}")
    A("v_lshlrev_b32 v5, 4, v0\nv_add_u32 v5, s86, v5")
    A("v_and_b32 v9, 15, v0\nv_add_u32 v10, 1, v9\nv_and_b32 v11, 3, v10\nv_mul_u32_u24 v6, 4160, v11")
    A("v_and_b32 v10, 28, v10\nv_lshl_add_u32 v6, v10, 1, v6\nv_and_b32 v11, 48, v0\nv_add3_u32 v6, v6, v11, s86")
    A("v_add_u32 v7, 2048, v6")
    A(f"v_lshlrev_b32 v9, 5, v9\nv_sub_u32 v8, v11, v9\ns_add_u32 s87, s86, {URL+480}\nv_add_u32 v8, s87, v8")
    for n in range(4):
        w = KW + 6*n
        C1 = 64 + 12*n; C2 = C1 + 4; C3 = C1 + 8
        if n == 0:
            A(f"v_lshlrev_b32 v4, 16, v{VD}\nv_lshlrev_b32 v9, 16, v{w}\nv_add_f32 v4, v4, v9\nv_and_b32 v9, 0xffff0000, v{w}")
            A("v_cmp_eq_u32 vcc, 0, v0")
            A("v_cvt_pk_bf16_f32 v4, v4, v9")
            A("s_nop 0")
            A(f"v_cndmask_b32 v{w}, v{w}, v4, vcc")
        A(f"ds_write_b128 v5, {vr(w,4)} offset:{32+1024*n}")
        for i in range(4): A(f"v_alignbit_b32 v{C1+i}, v{w+i+1}, v{w+i}, 16")
        A(f"ds_write_b128 v5, {vr(C1,4)} offset:{4160+32+1024*n}")
        for i in range(4): A(f"v_mov_b32 v{C2+i}, v{w+i+1}")
        A(f"ds_write_b128 v5, {vr(C2,4)} offset:{2*4160+32+1024*n}")
        for i in range(4): A(f"v_alignbit_b32 v{C3+i}, v{w+i+2}, v{w+i+1}, 16")
        A(f"ds_write_b128 v5, {vr(C3,4)} offset:{3*4160+32+1024*n}")
        if n == 0:
            A(f"v_lshlrev_b32 v56, 16, v{w}\nv_mov_b32 v57, v{C1}")
            A("s_mov_b64 exec, 1")
            A(f"ds_write_b32 v5, v56 offset:{4160+28}")
            A(f"ds_write_b32 v5, v{w} offset:{2*4160+28}")
            A(f"ds_write_b64 v5, v[56:57] offset:{3*4160+24}")
            A("s_mov_b64 exec, -1")
    SETS = [128, 64]
    CACC = 192
    for i in range(32): A(f"v_mov_b32 v{CACC+i}, 0")
    def creads(st, r):
        b = SETS[st]
        for i in range(8):
            o = (64*(i & 3) + 8*r)
            A(f"ds_read2_b64 {vr(b+4*i,4)}, v{6+(i>>2)} offset0:{o} offset1:{o+1}")
            A(f"ds_read_b128 {vr(b+32+4*i,4)}, v8 offset:{3584-512*i+64*r}")
    order = mfma_order()
    def cmfma(st):
        b = SETS[st]
        for x, y in order:
            A(f"v_mfma_f32_16x16x32_bf16 {vr(CACC+4*(x+y),4)}, {vr(b+4*x,4)}, {vr(b+32+4*y,4)}, {vr(CACC+4*(x+y),4)}")
    A.wait_vm("u")
    creads(0, 0)
    tick(A, 8)
    A("s_waitcnt vmcnt(0)")
    A("buffer_store_dword v13, v12, s[12:15], s81 offen sc1")
    tick(A, 9)
    A("s_mov_b32 s88, 0")
    A("G0_cloop:")
    A("s_waitcnt lgkmcnt(0)")
    creads(1, 1)
    cmfma(0)
    A("v_add_u32 v6, 128, v6\nv_add_u32 v7, 128, v7\nv_add_u32 v8, 128, v8")
    A("s_waitcnt lgkmcnt(0)")
    A("s_add_u32 s88, s88, 1\ns_cmp_eq_u32 s88, 4\ns_cbranch_scc1 G0_cdone")
    creads(0, 0)
    cmfma(1)
    A("s_branch G0_cloop")
    A("G0_cdone:")
    cmfma(1)
    tick(A, 10)
    A("v_and_b32 v9, 15, v0\nv_lshlrev_b32 v9, 5, v9\nv_lshrrev_b32 v10, 4, v0\nv_lshl_add_u32 v9, v10, 3, v9")
    A(f"s_add_u32 s87, s84, {YT}")
    A("s_nop 7")
    for J in range(8):
        A(f"v_cvt_pk_bf16_f32 v{16+2*J}, v{CACC+4*J}, v{CACC+4*J+1}\nv_cvt_pk_bf16_f32 v{17+2*J}, v{CACC+4*J+2}, v{CACC+4*J+3}")
        A(f"buffer_store_dwordx2 {vr(16+2*J,2)}, v9, s[12:15], s87 offen offset:{512*J} sc1")
    A("s_mul_i32 s87, s65, 52\ns_lshr_b32 s87, s87, 8\ns_mul_i32 s88, s87, 5\ns_sub_u32 s88, s65, s88\ns_lshl2_add_u32 s88, s88, s3")
    A(f"s_lshl2_add_u32 s87, s64, s87\ns_mul_i32 s87, s87, {FS}\ns_lshl2_add_u32 s87, s88, s87\ns_add_u32 s87, s87, {FY}")
    A("s_waitcnt vmcnt(0)")
    A("buffer_store_dword v13, v12, s[12:15], s87 offen sc1")
    tick(A, 11)
    if opt.conv_prio: A("s_setprio 0")
    A("s_branch G0_ypoll")
    A("G0_noconv:")
    A("s_waitcnt vmcnt(0)")
    A("buffer_store_dword v13, v12, s[12:15], s81 offen sc1")
    tick(A, 9)
    A("s_cmp_lg_u32 s2, 255\ns_cbranch_scc1 G0_ypoll\ns_cmp_lg_u32 s3, 0\ns_cbranch_scc1 G0_ypoll")
    A(f"v_lshrrev_b32 v4, 1, v0\nv_mul_u32_u24 v4, {FS}, v4\nv_and_b32 v5, 1, v0\nv_lshl_add_u32 v4, v5, 6, v4\ns_mov_b32 s87, {FH}\ns_mov_b32 s97, 0")
    A("G0_eloop:")
    for i in range(4): A(f"buffer_load_dwordx4 {vr(16+4*i,4)}, v4, s[12:15], s87 offen offset:{16*i} sc1")
    A("s_add_u32 s97, s97, 1")
    A("s_waitcnt vmcnt(0)")
    for i in range(16): A(f"v_xor_b32 v{16+i}, s{NONCE}, v{16+i}")
    for i in range(1, 15, 2): A(f"v_or3_b32 v16, v16, v{16+i}, v{17+i}")
    A("v_or_b32 v16, v16, v31")
    A("v_cmp_ne_u32 vcc, 0, v16")
    A(f"s_cmp_ge_u32 s97, {LIMIT}\ns_cbranch_scc1 G0_edone")
    A("s_cbranch_vccnz G0_eloop")
    A("G0_edone:")
    A(f"buffer_store_dword v13, v12, s[12:15], 0 offen offset:{EOFF} sc1")
    A("G0_ypoll:")
    A(f"s_lshl2_add_u32 s87, s71, s3\ns_mul_i32 s88, s87, {FS}\ns_add_u32 s88, s88, {FY}")
    A("v_min_u32 v9, 19, v0\nv_lshlrev_b32 v9, 2, v9")
    A("v_lshrrev_b32 v10, 4, v0\ns_lshl_b32 s89, s3, 1\nv_add_u32 v10, s89, v10\nv_lshlrev_b32 v10, 1, v10\nv_xor_b32 v10, v10, v0\nv_and_b32 v10, 7, v10")
    A("v_lshrrev_b32 v11, 3, v0\nv_lshlrev_b32 v11, 12, v11\nv_lshl_add_u32 v10, v10, 4, v11")
    A(f"s_mul_i32 s87, s87, {20*4096}\ns_lshl_b32 s89, s70, 7\ns_add_u32 s87, s87, s89\ns_add_u32 s87, s87, {YT}")
    A(f"s_add_u32 s86, s87, {32768-1024}\ns_add_u32 s85, s87, {65536-2048}")
    A(f"s_mul_i32 s89, s3, 2560\ns_add_u32 m0, s89, {YL}")
    tick(A, 12)
    poll(A, "G0_yp", "buffer_load_dword v14, v9, s[12:15], s88 offen sc1", 14)
    tick(A, 13)
    tick_cnt(A, 97, 63)
    A("buffer_load_dwordx4 v10, s[12:15], s87 offen lds")
    A("buffer_load_dwordx4 v10, s[12:15], s86 offen offset:1024 lds")
    A("s_mov_b32 exec_hi, 0")
    A("buffer_load_dwordx4 v10, s[12:15], s85 offen offset:2048 lds")
    A("s_mov_b64 exec, -1")
    A("s_waitcnt vmcnt(0)")
    tick(A, 14)
    A("s_barrier")
    if opt.ticks:
        tick(A, 15)
        tick_store(A, 0, 250)
    A("s_endpgm")

def gen():
    A = Asm()
    A("s_load_dwordx16 s[32:47], s[0:1], 0\ns_load_dwordx16 s[48:63], s[0:1], 56")
    A("s_cmp_ge_u32 s2, 256\ns_cbranch_scc1 K_end")
    if opt.cpf:
        A("s_getpc_b64 s[8:9]\nK_pc:\ns_mov_b32 s10, K_end-K_pc\ns_mov_b32 s11, 0x20000\ns_lshr_b32 s4, s2, 3\ns_lshl_b32 s4, s4, 10\nv_lshl_add_u32 v2, v0, 1, s4")
        A("buffer_load_ushort v254, v2, s[8:11], 0 offen")
    A("v_lshrrev_b32 v1, 6, v0\nv_and_b32 v0, 63, v0")
    A("s_and_b32 s64, s2, 7\ns_lshr_b32 s65, s2, 3")
    A("v_readfirstlane_b32 s3, v1")
    A("s_lshr_b32 s66, s65, 3\ns_and_b32 s67, s65, 7\ns_lshr_b32 s70, s64, 1\ns_lshl2_add_u32 s68, s70, s66")
    A("s_and_b32 s71, s64, 1\ns_lshl3_add_u32 s69, s71, s67")
    A("s_lshr_b32 s72, s65, 2\ns_lshl3_add_u32 s70, s70, s72\ns_and_b32 s72, s65, 3\ns_lshl2_add_u32 s71, s71, s72")
    tick_init(A); tick(A, 0)
    A("s_cmp_lt_u32 s3, 4\ns_cbranch_scc1 G0")
    A("s_sub_u32 s3, s3, 4")
    A("s_mul_i32 s80, s66, 3\ns_add_u32 s80, s80, s67\ns_cmp_ge_u32 s80, 10\ns_cselect_b32 s81, 10, 0\ns_sub_u32 s80, s80, s81")
    A("v_lshrrev_b32 v1, 3, v0\nv_lshrrev_b32 v2, 4, v0\nv_and_b32 v3, 7, v0\nv_xor_b32 v3, v3, v2")
    A("v_mul_u32_u24 v1, 1280, v1\nv_lshl_add_u32 v4, v3, 4, v1\nv_xor_b32 v5, 64, v4")
    A(f"v_add_u32 v6, {16*1280-2048}, v4\nv_add_u32 v7, {24*1280-3072}, v5\nv_add_u32 v5, {8*1280-1024}, v5")
    A("s_movk_i32 s94, 2880\nv_lshlrev_b32 v3, 4, v0")
    for i in range(3):
        A(f"v_add_u32 v1, {64*i}, v0\nv_mul_u32_u24 v1, 171, v1\nv_lshrrev_b32 v1, 11, v1\nv_mad_u32_u24 v{8+i}, v1, s94, v3")
    A("s_movk_i32 s94, 960")
    A("s_lshl_b32 s72, s3, 12")
    A(f"s_mul_i32 s73, s3, 3072\ns_add_u32 s73, s73, {WB}")
    A("s_lshl2_add_u32 s74, s68, s3\ns_mul_i32 s74, s74, 40960")
    A("s_mul_i32 s75, s3, 49152\ns_mul_i32 s76, s69, 192\ns_add_u32 s75, s75, s76")
    A("s_lshl_b32 s78, s80, 7\ns_mul_i32 s79, s80, 196608")
    A("s_waitcnt lgkmcnt(0)")
    A(f"s_load_dword s{NONCE}, s[62:63], {EOFF}")
    A.srd(4, 32, 2621440)
    A.srd(8, 48, 1966080)
    A.srd(12, 62, WS_SIZE)
    A("s_cmp_ge_u32 s65, 20\ns_cbranch_scc1 G1_W")
    g1_loader(A, True, "G1U")
    A("s_branch G1_G2")
    A("G1_W:")
    g1_loader(A, False, "G1W")
    A("G1_G2:")
    g1_gemm2(A)
    A("G0:")
    g0(A)
    A("K_end:")
    A("s_endpgm")
    return dict(name=KN + "_kernel", grid=256, block=512, lds=LDS_SIZE, body=A.text(), vgpr=256)

if __name__ == "__main__":
    import argparse
    ap = argparse.ArgumentParser()
    ap.add_argument("-o", default="f.s")
    ap.add_argument("--set", action="append", default=[])
    a = ap.parse_args()
    for s in a.set:
        k, v = s.split("="); setattr(opt, k, eval(v))
    open(a.o, "w").write(build_file([gen()]))
```
